```python
import torch

def _softmax(x, axis=-1):
    return torch.softmax(x, dim=axis)
def _gelu(x):
    return torch.nn.functional.gelu(x, approximate="tanh")
def _silu(x):
    return torch.nn.functional.silu(x)
def _sigmoid(x):
    return torch.sigmoid(x)
def _layernorm(x, axis=-1, eps=1e-5):
    m = x.mean(dim=axis, keepdim=True)
    v = x.var(dim=axis, keepdim=True, unbiased=False)
    return (x - m) / torch.sqrt(v + eps)
def _scatter_add(tgt, idx, src, axis=0):
    return tgt.clone().index_add_(axis, idx, src)
def _segment_sum(src, seg, n):
    out = torch.zeros((n,) + src.shape[1:], dtype=src.dtype)
    return out.index_add_(0, seg, src)
def _pad(x, pw):
    flat = tuple(v for pair in reversed(pw) for v in pair)
    return torch.nn.functional.pad(x, flat)

kernel_name = 'recurrent_scan__mha_block_cached__geglu_ffn__decode'

def setup_inputs():

    _w = (lambda a: (lambda t: t.to(torch.bfloat16) if t.is_floating_point() else t)(torch.as_tensor(a)))
    def _A_setup():
        B, Sq, D = 4, 1, 512
        H, Sk, Dh = 32, 8192, 128
        return {
            "x": _w((lambda *s: torch.randn(*s, dtype=torch.bfloat16) * 0.05)(B, Sq, D)),
            "k_cache": _w((lambda *s: torch.randn(*s, dtype=torch.bfloat16) * 1.6)(B, H, Sk, Dh)),
            "v_cache": _w((lambda *s: torch.randn(*s, dtype=torch.bfloat16) * 0.2)(B, H, Sk, Dh)),
            "wq": _w((lambda *s: torch.randn(*s, dtype=torch.bfloat16) * 1.6)(D, H * Dh) * (D ** -0.5)),
            "wo": _w((lambda *s: torch.randn(*s, dtype=torch.bfloat16) * 0.2)(H * Dh, D) * ((H * Dh) ** -0.5)),
        }
    _A_in = _A_setup()

    def _B_setup():
        B, S, D, F = 4, 1, 512, 1376
        return {
            "x": _w((lambda *s: torch.randn(*s, dtype=torch.bfloat16) * 0.05)(B, S, D)),
            "w_gate": _w((lambda *s: torch.randn(*s, dtype=torch.bfloat16) * 0.1)(D, F)),
            "w_up": _w((lambda *s: torch.randn(*s, dtype=torch.bfloat16) * 0.1)(D, F)),
            "w_down": _w((lambda *s: torch.randn(*s, dtype=torch.bfloat16) * 0.1)(F, D)),
        }
    _B_in = _B_setup()

    return {
        "A_x": _A_in["x"],
        "A_k_cache": _A_in["k_cache"],
        "A_v_cache": _A_in["v_cache"],
        "A_wq": _A_in["wq"],
        "A_wo": _A_in["wo"],
        "B_x": _B_in["x"],
        "B_w_gate": _B_in["w_gate"],
        "B_w_up": _B_in["w_up"],
        "B_w_down": _B_in["w_down"],
    }

def reference(A_x, A_k_cache, A_v_cache, A_wq, A_wo, B_x, B_w_gate, B_w_up, B_w_down):
    def _A_ref(x, k_cache, v_cache, wq, wo):
        B, Sq, D = x.shape
        H, Dh = 32, 128
        q = (lambda x, *d: x.permute(*d))((x @ wq).reshape(B, Sq, H, Dh), 0, 2, 1, 3)
        scores = torch.einsum("bhqd,bhkd->bhqk", q, k_cache) * (Dh ** -0.5)
        p = _softmax(scores, axis=-1)
        o = torch.einsum("bhqk,bhkd->bhqd", p, v_cache)
        return (lambda x, *d: x.permute(*d))(o, 0, 2, 1, 3).reshape(B, Sq, H * Dh) @ wo

    def _B_ref(x, w_gate, w_up, w_down):
        return (_gelu(x @ w_gate) * (x @ w_up)) @ w_down

    x = A_x
    xn = _layernorm(x, axis=-1)
    s = _A_ref(xn, A_k_cache, A_v_cache, A_wq, A_wo)
    g = _silu(_B_ref(xn, B_w_gate, B_w_up, B_w_down))
    return x + s * g
```

```python
import sys, os
from common import build

KNAME = "recurrent_scan__mha_block_cached__geglu_ffn__decode_kernel"

HEADER = """; Kernarg layout for this problem (96 bytes, ptrs only, base s[0:1]):
;
"""

WS_Y   = 0x00000
WS_ML  = 0x80000
WS_Y2  = 0x90000
WS_N   = 0xF0000
WS_SZ  = 0x100000
WS_TS  = 0x100000
L_SP  = 0x0000
L_QP  = 0x4000
L_OP  = 0x4800
L_XN  = 0x5000
L_ML  = 0x5800
L_FL  = 0x5820
L_PR  = 0x5830
L_SC  = 0x5840
L_G   = 0x5860
L_HL  = 0x5880
L_KB  = 0x6000
DPPF = "row_mask:0xf bank_mask:0xf"


class Gen:
    def __init__(self, D=5, DF=5, B=48, BL=0, BT=16, DQ=3, DO=2, DF1=1, DF2=2, LG=12, ffn_wave=3,
                 kvflags="nt", wflags="nt", woflags="nt", fflags="nt", pubflags="sc1",
                 ts=False, prefetch_code=True, prio=True, spin_limit=1 << 16, fsleep=1,
                 do_ffn=True, do_wo=True, do_exch=True, do_tail=True, do_final=True, helper_exit=False,
                 skip_wq=False):
        self.__dict__.update(locals())
        del self.__dict__["self"]
        self.L = []
        self.uid = 0
        self.lds_bytes = 0x5A00 if BL == 0 else L_KB + 4 * BL * 1024

    def A(self, s):
        self.L.append("  " + s)
    def lab(self, s):
        self.L.append(s + ":")
    def newlab(self, base):
        self.uid += 1
        return f"L_{base}_{self.uid}"

    def stamp(self, k):
        if self.ts:
            self.A(f"s_memrealtime s[{64+2*k}:{65+2*k}]")

    def write_stamps(self, n):
        if not self.ts:
            return
        A = self.A
        A("s_load_dwordx2 s[40:41], s[0:1], 88")
        A("s_waitcnt lgkmcnt(0)")
        A(f"s_add_u32 s40, s40, {WS_TS}")
        A("s_addc_u32 s41, s41, 0")
        A("s_mov_b32 s42, 0x100000")
        A("s_mov_b32 s43, 0x20000")
        A("s_lshl_b32 s44, s2, 3")
        A("s_add_u32 s44, s44, s3")
        A("s_lshl_b32 s44, s44, 7")
        A("s_mov_b64 exec, 1")
        A("v_mov_b32 v1, 0")
        for k in range(n):
            A(f"v_mov_b32 v0, s{64+2*k}")
            A(f"buffer_store_dword v0, v1, s[40:43], s44 offen offset:{4*k}")
            A("s_nop 1")
        A("s_waitcnt vmcnt(0)")
        A("s_mov_b64 exec, -1")

    def srd(self, dst, src, size):
        A = self.A
        A(f"s_mov_b32 s{dst}, s{src}")
        A(f"s_mov_b32 s{dst+1}, s{src+1}")
        A(f"s_mov_b32 s{dst+2}, {size}")
        A(f"s_mov_b32 s{dst+3}, 0x20000")

    def paced(self, n, d, issue, consume, per=1, pre=None):
        d = min(d, n)
        for j in range(d):
            issue(j)
        if pre: pre()
        for j in range(d, n + d):
            k = j - d
            left = min(d - 1, n - 1 - k)
            self.A(f"s_waitcnt vmcnt({left * per})")
            if j < n: issue(j)
            consume(k)

    def reduce8_rows(self, a):
        A = self.A
        for e in range(4):
            A(f"v_permlane32_swap_b32 v{a[e]}, v{a[e+4]}")
        for e in range(4):
            A(f"v_add_f32 v{a[e]}, v{a[e]}, v{a[e+4]}")
        A("s_nop 0")
        A(f"v_permlane16_swap_b32 v{a[0]}, v{a[2]}")
        A(f"v_permlane16_swap_b32 v{a[1]}, v{a[3]}")
        A(f"v_add_f32 v{a[0]}, v{a[0]}, v{a[2]}")
        A(f"v_add_f32 v{a[1]}, v{a[1]}, v{a[3]}")

    def reduce8_wave(self, a):
        A = self.A
        self.reduce8_rows(a)
        A("s_nop 1")
        A(f"v_add_f32_dpp v{a[0]}, v{a[0]}, v{a[0]} row_ror:8 row_mask:0xf bank_mask:0x3")
        A(f"v_add_f32_dpp v{a[0]}, v{a[1]}, v{a[1]} row_ror:8 row_mask:0xf bank_mask:0xc")
        A("s_nop 1")
        A(f"v_add_f32_dpp v{a[0]}, v{a[0]}, v{a[0]} row_half_mirror {DPPF}")
        A("s_nop 1")
        A(f"v_add_f32_dpp v{a[0]}, v{a[0]}, v{a[0]} quad_perm:[2,3,0,1] {DPPF}")
        A("s_nop 1")
        A(f"v_add_f32_dpp v{a[0]}, v{a[0]}, v{a[0]} quad_perm:[1,0,3,2] {DPPF}")

    def allreduce(self, op, x, t):
        A = self.A
        for m in ("row_ror:8", "row_ror:4", "row_ror:2", "row_ror:1"):
            A("s_nop 1")
            A(f"{op}_dpp v{x}, v{x}, v{x} {m} {DPPF}")
        A(f"v_mov_b32 v{t}, v{x}")
        A("s_nop 1")
        A(f"v_permlane16_swap_b32 v{x}, v{t}")
        A(f"{op} v{x}, v{x}, v{t}")
        A(f"v_mov_b32 v{t}, v{x}")
        A("s_nop 1")
        A(f"v_permlane32_swap_b32 v{x}, v{t}")
        A(f"{op} v{x}, v{x}, v{t}")

    def round_bf16(self, dst, src):
        self.A(f"v_cvt_pk_bf16_f32 v{dst}, v{src}, v{src}")
        self.A(f"v_and_b32 v{dst}, 0xffff0000, v{dst}")

    def streamer(self):
        A, D, B, BL = self.A, self.D, self.B, self.BL
        VOFF, VLDS, VM, VL, VT = 3, 4, 5, 6, 7
        Q = [8, 9, 10, 11]
        T = list(range(12, 28))
        ACC = list(range(28, 36))
        PL, PH, PLN = 36, 37, 38
        VPRA, VPRV, VKB = 44, 45, 46
        R0, E0 = 48, 112
        assert 16 <= B <= 48 and B % 16 == 0 and BL in (0, 16, 32)
        KS, VS = 12, 16
        SBASE, SOFF, SCNT = 20, 21, 22
        M1, M2, SSC, SLG = 24, 26, 28, 29
        NF = B + BL

        self.lab("L_stream")
        A("s_and_b32 s23, s2, 7")
        A("s_bfe_u32 s30, s2, 0x20003")
        A("s_lshl_b32 s30, s30, 3")
        A("s_add_u32 s23, s23, s30")
        A("s_lshr_b32 s30, s2, 6")
        A("s_lshl_b32 s30, s30, 5")
        A("s_add_u32 s23, s23, s30")
        A("s_lshl_b32 s23, s23, 1")
        A("s_bfe_u32 s30, s2, 0x10005")
        A("s_add_u32 s23, s23, s30")
        A(f"s_lshl_b32 s{SBASE}, s23, 20")
        A("s_lshl_b32 s30, s3, 10")
        A(f"v_lshlrev_b32 v{VOFF}, 4, v2")
        A(f"v_add_u32 v{VOFF}, s30, v{VOFF}")
        A(f"s_mov_b32 s{SOFF}, s{SBASE}")
        if BL:
            A(f"s_mul_i32 s31, s3, {BL*1024}")
            A(f"s_add_u32 s31, s31, {L_KB}")
        A("s_waitcnt lgkmcnt(0)")
        self.srd(KS, 8, 0x10000000)

        issued, consumed = [], set()
        state = {"next": 0}
        def is_lds(n): return B <= n < NF
        def slot(n):
            if n < 16: return R0 + 4 * n
            if n < B: return E0 + 4 * (n - 16)
            return R0 + 4 * (n % 16)
        def slot_free(n):
            if is_lds(n): return True
            s = slot(n)
            return not any(m < n and not is_lds(m) and slot(m) == s and m not in consumed for m in issued)
        def issue(n):
            assert n == state["next"]
            if n == 256:
                A(f"s_mov_b32 s{SOFF}, s{SBASE}")
            srd = KS if n < 256 else VS
            if is_lds(n):
                A(f"s_add_u32 m0, s31, {(n - B) * 1024}")
                A("s_nop 0")
                A(f"buffer_load_dwordx4 v{VOFF}, s[{srd}:{srd+3}], s{SOFF} offen {self.kvflags} lds")
            else:
                s = slot(n)
                A(f"buffer_load_dwordx4 v[{s}:{s+3}], v{VOFF}, s[{srd}:{srd+3}], s{SOFF} offen {self.kvflags}")
            A(f"s_add_u32 s{SOFF}, s{SOFF}, 0x1000")
            issued.append(n); state["next"] = n + 1
        def wait_for(n):
            cnt = len(issued) - 1 - issued.index(n)
            assert cnt <= 63
            A(f"s_waitcnt vmcnt({cnt})")
        def issue_upto(lim):
            while state["next"] <= lim and state["next"] < 512 and slot_free(state["next"]):
                issue(state["next"])

        for j in range(NF):
            if j >= self.DF:
                wait_for(j - self.DF)
            issue(j)
            if j == 0:
                self.srd(VS, 10, 0x10000000)
            if j == 1:
                A(f"s_mov_b32 s{M1}, 0xaaaaaaaa"); A(f"s_mov_b32 s{M1+1}, 0xaaaaaaaa")
                A(f"s_mov_b32 s{M2}, 0xcccccccc"); A(f"s_mov_b32 s{M2+1}, 0xcccccccc")
                A(f"s_mov_b32 s{SSC}, 0x3db504f3"); A(f"s_mov_b32 s{SLG}, 0x3fb8aa3b")
            if j == 2:
                A("s_lshl_b32 s30, s3, 12")
                A(f"v_lshlrev_b32 v{VLDS}, 2, v2")
                A(f"v_add_u32 v{VLDS}, s30, v{VLDS}")
                A(f"v_mov_b32 v{VM}, 0xff800000")
                A("v_and_b32 v1, 15, v2")
                A("v_lshlrev_b32 v1, 5, v1")
                A("s_lshl_b32 s30, s3, 2")
                A(f"v_mov_b32 v{VPRA}, s30")
                if BL:
                    A(f"v_lshlrev_b32 v{VKB}, 4, v2")
                    A(f"v_add_u32 v{VKB}, s31, v{VKB}")
                if self.prio: A("s_setprio 2")
        self.stamp(1)
        A("s_barrier")
        self.stamp(2)
        for hw in range(4):
            A(f"ds_read_b128 v[{12+8*hw}:{15+8*hw}], v1 offset:{L_QP + hw*512}")
            A(f"ds_read_b128 v[{16+8*hw}:{19+8*hw}], v1 offset:{L_QP + hw*512 + 16}")
        A("s_waitcnt lgkmcnt(4)")
        for e in range(8):
            A(f"v_add_f32 v{12+e}, v{12+e}, v{20+e}")
        A("s_waitcnt lgkmcnt(0)")
        for e in range(8):
            A(f"v_add_f32 v{28+e}, v{28+e}, v{36+e}")
        for e in range(8):
            A(f"v_add_f32 v{12+e}, v{12+e}, v{28+e}")
        for e in range(4):
            A(f"v_cvt_pk_bf16_f32 v{Q[e]}, v{12+2*e}, v{13+2*e}")

        def kgroup(g, in_loop=False):
            lds_group = (not in_loop) and is_lds(16 * g)
            if lds_group:
                wait_for(16 * g + 15)
                for i in range(16):
                    s = E0 + 4 * i
                    A(f"ds_read_b128 v[{s}:{s+3}], v{VKB} offset:{(16 * g - B + i) * 1024}")
            for i in range(16):
                n = None if in_loop else 16 * g + i
                if in_loop:
                    A(f"s_waitcnt vmcnt({D-1})")
                    s = R0 + 4 * ((i + D) % 16)
                    A(f"buffer_load_dwordx4 v[{s}:{s+3}], v{VOFF}, s[{KS}:{KS+3}], s{SOFF} offen {self.kvflags}")
                    A(f"s_add_u32 s{SOFF}, s{SOFF}, 0x1000")
                    s = R0 + 4 * i
                else:
                    if not lds_group:
                        wait_for(n)
                    lim = n + D
                    if n < NF: lim = max(lim, NF + D - 1)
                    issue_upto(lim)
                    if lds_group:
                        A(f"s_waitcnt lgkmcnt({min(15, 15 - i)})")
                        s = E0 + 4 * i
                    else:
                        s = slot(n)
                A(f"v_dot2_f32_bf16 v{T[i]}, v{s}, v{Q[0]}, 0")
                for e in range(1, 4):
                    A(f"v_dot2_f32_bf16 v{T[i]}, v{s+e}, v{Q[e]}, v{T[i]}")
                if not in_loop:
                    consumed.add(n)
                if i >= 9:
                    k = i - 9
                    A(f"v_add_f32_dpp v{T[k]}, v{T[k]}, v{T[k]} row_ror:8 row_mask:0xf bank_mask:0x3")
                    A(f"v_add_f32_dpp v{T[k]}, v{T[k+8]}, v{T[k+8]} row_ror:8 row_mask:0xf bank_mask:0xc")
            A("s_nop 0")
            A(f"v_add_f32_dpp v{T[7]}, v{T[7]}, v{T[7]} row_ror:8 row_mask:0xf bank_mask:0x3")
            A(f"v_add_f32_dpp v{T[7]}, v{T[15]}, v{T[15]} row_ror:8 row_mask:0xf bank_mask:0xc")
            for k in range(4):
                A(f"v_add_f32_dpp v{T[k]}, v{T[k]}, v{T[k]} row_half_mirror row_mask:0xf bank_mask:0x5")
                A(f"v_add_f32_dpp v{T[k]}, v{T[k+4]}, v{T[k+4]} row_half_mirror row_mask:0xf bank_mask:0xa")
            A("s_nop 0")
            for k in range(4):
                A(f"v_add_f32_dpp v{T[k]}, v{T[k]}, v{T[k]} quad_perm:[2,3,0,1] {DPPF}")
            A(f"v_cndmask_b32_e64 v{T[0]}, v{T[0]}, v{T[2]}, s[{M2}:{M2+1}]")
            A(f"v_cndmask_b32_e64 v{T[1]}, v{T[1]}, v{T[3]}, s[{M2}:{M2+1}]")
            A("s_nop 0")
            A(f"v_add_f32_dpp v{T[0]}, v{T[0]}, v{T[0]} quad_perm:[1,0,3,2] {DPPF}")
            A(f"v_add_f32_dpp v{T[1]}, v{T[1]}, v{T[1]} quad_perm:[1,0,3,2] {DPPF}")
            A(f"v_cndmask_b32_e64 v{T[0]}, v{T[0]}, v{T[1]}, s[{M1}:{M1+1}]")
            self.round_bf16(T[0], T[0])
            A(f"v_mul_f32 v{T[0]}, s{SSC}, v{T[0]}")
            self.round_bf16(T[0], T[0])
            A(f"v_max_f32 v{VM}, v{VM}, v{T[0]}")
            A(f"ds_write_b32 v{VLDS}, v{T[0]} offset:{L_SP}")
            A(f"v_add_u32 v{VLDS}, 0x100, v{VLDS}")

        npeel = max(2, NF // 16)
        for g in range(npeel):
            kgroup(g)
        self.stamp(3)
        assert state["next"] == 16 * npeel + D, (state["next"], D)
        A(f"s_mov_b32 s{SCNT}, {15 - npeel}")
        self.lab("L_kloop")
        kgroup(None, in_loop=True)
        A(f"s_sub_u32 s{SCNT}, s{SCNT}, 1")
        A(f"s_cmp_lg_u32 s{SCNT}, 0")
        A("s_cbranch_scc1 L_kloop")
        for n in range(16 * npeel + D, 240 + D): issued.append(n)
        for n in range(16 * npeel, 240): consumed.add(n)
        state["next"] = 240 + D
        kgroup(15)
        self.stamp(4)
        issue_upto(256 + self.BT - 1)
        A(f"v_add_u32 v{VLDS}, 0xfffff000, v{VLDS}")
        for g in range(16):
            A(f"ds_read_b32 v{T[g]}, v{VLDS} offset:{L_SP + 256*g}")
        self.allreduce("v_max_f32", VM, VT)
        A(f"v_mov_b32 v{VL}, 0")
        for g in range(16):
            A(f"s_waitcnt lgkmcnt({15 - g})")
            A(f"v_sub_f32 v{T[g]}, v{T[g]}, v{VM}")
            A(f"v_mul_f32 v{T[g]}, s{SLG}, v{T[g]}")
            A(f"v_exp_f32 v{T[g]}, v{T[g]}")
            if g > 0:
                A(f"v_add_f32 v{VL}, v{VL}, v{T[g-1]}")
                A(f"v_cvt_pk_bf16_f32 v{T[g-1]}, v{T[g-1]}, 0")
        A("s_nop 0")
        A(f"v_add_f32 v{VL}, v{VL}, v{T[15]}")
        A(f"v_cvt_pk_bf16_f32 v{T[15]}, v{T[15]}, 0")
        for g in range(1, 16):
            A(f"ds_write_b32 v{VLDS}, v{T[g]} offset:{L_SP + 256*g}")
        A(f"v_mov_b32 v{PL}, v{T[0]}")
        A(f"v_lshlrev_b32 v{PH}, 16, v{T[0]}")
        self.allreduce("v_add_f32", VL, VT)
        A(f"v_lshlrev_b32 v1, 1, v{VPRA}")
        A(f"v_mov_b32 v40, v{VM}")
        A(f"v_mov_b32 v41, v{VL}")
        A("v_mov_b32 v42, 1")
        A("s_mov_b64 exec, 1")
        A(f"ds_write_b64 v1, v[40:41] offset:{L_ML}")
        A(f"ds_write_b32 v{VPRA}, v42 offset:{L_FL}")
        A("s_mov_b64 exec, -1")
        for e in range(8):
            A(f"v_mov_b32 v{ACC[e]}, 0")
        self.stamp(5)

        def vgroup(g, in_loop=False, last=False):
            if not last:
                A(f"v_add_u32 v{VLDS}, 0x100, v{VLDS}")
                A(f"ds_read_b32 v{PLN}, v{VLDS} offset:{L_SP}")
            if in_loop:
                A(f"v_mov_b32 v{VPRV}, s{SCNT}")
                A(f"ds_write_b32 v{VPRA}, v{VPRV} offset:{L_PR}")
            for i in range(16):
                if in_loop:
                    A(f"s_waitcnt vmcnt({D-1})")
                    s = R0 + 4 * ((i + D) % 16)
                    A(f"buffer_load_dwordx4 v[{s}:{s+3}], v{VOFF}, s[{VS}:{VS+3}], s{SOFF} offen {self.kvflags}")
                    A(f"s_add_u32 s{SOFF}, s{SOFF}, 0x1000")
                    s = R0 + 4 * i
                else:
                    n = 256 + 16 * g + i
                    wait_for(n)
                    issue_upto(n + D)
                    s = slot(n)
                for e in range(4):
                    A(f"v_dot2c_f32_bf16_dpp v{ACC[2*e]}, v{PL}, v{s+e} row_newbcast:{i} {DPPF}")
                    A(f"v_dot2c_f32_bf16_dpp v{ACC[2*e+1]}, v{PH}, v{s+e} row_newbcast:{i} {DPPF}")
                if not in_loop:
                    consumed.add(n)
            if not last:
                A("s_waitcnt lgkmcnt(0)")
                A(f"v_mov_b32 v{PL}, v{PLN}")
                A(f"v_lshlrev_b32 v{PH}, 16, v{PLN}")

        A("s_nop 1")
        vgroup(0)
        assert state["next"] == 256 + 16 + D, state["next"]
        A(f"s_mov_b32 s{SCNT}, 14")
        self.lab("L_vloop")
        vgroup(1, in_loop=True)
        A(f"s_sub_u32 s{SCNT}, s{SCNT}, 1")
        A(f"s_cmp_lg_u32 s{SCNT}, 0")
        A("s_cbranch_scc1 L_vloop")
        for n in range(256 + 16 + D, 256 + 240 + D): issued.append(n)
        for n in range(256 + 16, 256 + 240): consumed.add(n)
        state["next"] = 256 + 240 + D
        vgroup(15, last=True)
        self.stamp(6)
        A("v_lshrrev_b32 v1, 4, v2")
        A("v_and_b32 v7, 15, v2")
        A("v_lshlrev_b32 v1, 3, v1")
        A("v_lshl_add_u32 v1, v7, 5, v1")
        A("s_lshl_b32 s30, s3, 9")
        A("v_add_u32 v1, s30, v1")
        self.reduce8_rows(ACC)
        A(f"ds_write_b64 v1, v[{ACC[0]}:{ACC[1]}] offset:{L_OP}")
        A("s_waitcnt lgkmcnt(0)")
        A("s_barrier")
        self.stamp(7)
        self.write_stamps(8)
        A("s_endpgm")

    def tag(self, reg):
        self.A(f"v_bfi_b32 v{reg}, s{self.SFF}, v12, v{reg}")

    def poll(self, dst, n, voff, srd, soff, sleep):
        A = self.A
        lp = self.newlab("poll"); dn = self.newlab("polldone")
        A(f"s_mov_b32 s60, {self.spin_limit}")
        self.lab(lp)
        if n == 8:
            A(f"buffer_load_dwordx4 v[{dst}:{dst+3}], v{voff}, s[{srd}:{srd+3}], s{soff} offen sc1")
            A(f"buffer_load_dwordx4 v[{dst+4}:{dst+7}], v{voff}, s[{srd}:{srd+3}], s{soff} offen offset:16 sc1")
            A("s_waitcnt vmcnt(0)")
            A(f"v_bitop3_b32 v15, v{dst}, v{dst+1}, v{dst+2} bitop3:0x80")
            A(f"v_or3_b32 v13, v{dst}, v{dst+1}, v{dst+2}")
            A(f"v_bitop3_b32 v15, v15, v{dst+3}, v{dst+4} bitop3:0x80")
            A(f"v_or3_b32 v13, v13, v{dst+3}, v{dst+4}")
            A(f"v_bitop3_b32 v15, v15, v{dst+5}, v{dst+6} bitop3:0x80")
            A(f"v_or3_b32 v13, v13, v{dst+5}, v{dst+6}")
            A(f"v_and_b32 v15, v15, v{dst+7}")
            A(f"v_or_b32 v13, v13, v{dst+7}")
        else:
            assert n == 2
            A(f"buffer_load_dwordx2 v[{dst}:{dst+1}], v{voff}, s[{srd}:{srd+3}], s{soff} offen sc1")
            A("s_waitcnt vmcnt(0)")
            A(f"v_and_b32 v15, v{dst}, v{dst+1}")
            A(f"v_or_b32 v13, v{dst}, v{dst+1}")
        A("v_bitop3_b32 v15, v15, v13, v12 bitop3:0x7e")
        A("v_and_b32 v15, 0xff, v15")
        A("v_cmp_ne_u32 vcc, 0, v15")
        A("s_sub_u32 s60, s60, 1")
        A(f"s_cbranch_scc1 {dn}")
        A("s_and_b64 exec, exec, vcc")
        A(f"s_cbranch_scc0 {dn}")
        A(f"s_sleep {sleep}")
        A(f"s_branch {lp}")
        self.lab(dn)
        A("s_mov_b64 exec, -1")
        for e in range(n):
            A(f"v_and_b32 v{dst+e}, 0xffffff00, v{dst+e}")

    def lds_wait(self, emit_read_and_test, sleep=8):
        A = self.A
        lp = self.newlab("ldsw"); ld = self.newlab("ldsd")
        A(f"s_mov_b32 s60, {self.spin_limit}")
        self.lab(lp)
        emit_read_and_test()
        A(f"s_cbranch_scc1 {ld}")
        A("s_sub_u32 s60, s60, 1")
        A(f"s_cbranch_scc1 {ld}")
        A(f"s_sleep {sleep}")
        A(f"s_branch {lp}")
        self.lab(ld)

    def helper(self):
        A = self.A
        XS, WQS, WOS, WGS, WUS, WDS, OUTS, WSS = 12, 16, 16, 20, 24, 28, 32, 40
        SH, SB, SHW, SCG, SU, STAG, SFF = 61, 62, 63, 4, 5, 6, 7
        T0, T1, T2, T3, T4, T5 = 84, 85, 86, 87, 88, 89
        self.T = (T0, T1, T2, T3, T4, T5)
        self.SFF, self.STAG = SFF, STAG
        W0 = 64
        ACC = list(range(16, 24))
        self.lab("L_helper")
        A("s_load_dwordx2 s[44:45], s[0:1], 0")
        A("s_load_dwordx2 s[46:47], s[0:1], 24")
        A("s_load_dwordx2 s[50:51], s[0:1], 88")
        A(f"s_sub_u32 s{SHW}, s3, 4")
        if self.prefetch_code:
            lnp = self.newlab("nopf")
            A(f"s_cmp_eq_u32 s{SHW}, 3")
            A(f"s_cbranch_scc0 {lnp}")
            A("s_getpc_b64 s[90:91]")
            self.lab("L_pc_ref")
            A(f"s_sub_u32 s90, s90, L_pc_ref-{KNAME}")
            A("s_subb_u32 s91, s91, 0")
            A(f"s_lshr_b32 s{T0}, s2, 3")
            A(f"s_lshl_b32 s{T0}, s{T0}, 10")
            A("v_lshlrev_b32 v10, 4, v2")
            A(f"v_add_u32 v10, s{T0}, v10")
            A("PREFETCH_PLACEHOLDER")
            self.lab(lnp)
        A(f"s_and_b32 s{SH}, s2, 7")
        A(f"s_bfe_u32 s{T0}, s2, 0x20003")
        A(f"s_lshl_b32 s{T0}, s{T0}, 3")
        A(f"s_add_u32 s{SH}, s{SH}, s{T0}")
        A(f"s_lshr_b32 s{SB}, s2, 6")
        A(f"s_and_b32 s{SCG}, s2, 7")
        A(f"s_lshl_b32 s{SCG}, s{SCG}, 3")
        A(f"s_bfe_u32 s{T0}, s2, 0x30003")
        A(f"s_add_u32 s{SCG}, s{SCG}, s{T0}")
        A(f"s_and_b32 s{SU}, s2, 7")
        A(f"s_mul_i32 s{SU}, s{SU}, 6")
        A(f"s_add_u32 s{SU}, s{SU}, s{T0}")
        A(f"s_cmp_ge_u32 s{T0}, 6")
        A(f"s_cselect_b32 s{SU}, 63, s{SU}")
        A("v_lshrrev_b32 v3, 4, v2")
        A("v_and_b32 v4, 15, v2")
        A(f"s_lshl_b32 s{T1}, s{SB}, 10")
        A("v_lshlrev_b32 v5, 4, v2")
        A(f"v_add_u32 v5, s{T1}, v5")
        A(f"s_lshl_b32 s{T2}, s{SHW}, 7")
        A("v_lshl_add_u32 v6, v4, 2, v3")
        A(f"v_add_u32 v6, s{T2}, v6")
        A("v_lshlrev_b32 v7, 1, v6")
        A(f"v_add_u32 v7, s{T1}, v7")
        A(f"v_add_u32 v8, s{T2}, v3")
        A("v_lshlrev_b32 v8, 13, v8")
        A(f"s_lshl_b32 s{T3}, s{SH}, 8")
        A(f"v_lshl_add_u32 v10, v4, 4, s{T3}")
        A("v_add_u32 v8, v8, v10")
        A(f"s_lshl_b32 s{T5}, s{SB}, 7")
        A(f"s_add_u32 s{T5}, s{T5}, {WS_N}")
        A("s_waitcnt lgkmcnt(0)")
        A(f"s_load_dword s{STAG}, s[50:51], s{T5}")
        self.srd(XS, 44, 4096)
        self.srd(WQS, 46, 0 if self.skip_wq else 0x400000)
        A(f"buffer_load_dwordx4 v[24:27], v5, s[{XS}:{XS+3}], 0 offen")
        A(f"buffer_load_ushort v28, v7, s[{XS}:{XS+3}], 0 offen")
        A(f"buffer_load_ushort v29, v7, s[{XS}:{XS+3}], 0 offen offset:128")
        A(f"s_mov_b32 s{T4}, 0")
        def wq_issue(i):
            A(f"buffer_load_dwordx4 v[{W0+4*i}:{W0+4*i+3}], v8, s[{WQS}:{WQS+3}], s{T4} offen {self.wflags}")
            if i < 31: A(f"s_add_u32 s{T4}, s{T4}, 0x8000")
        DQ = self.DQ
        for i in range(DQ):
            wq_issue(i)
        self.srd(WSS, 50, WS_SZ)
        self.stamp(1)
        A("v_mov_b32 v12, 0")
        A("v_mov_b32 v15, 100")
        A("v_lshlrev_b32 v13, 2, v2")
        A("s_mov_b64 exec, 15")
        A(f"ds_write_b32 v13, v12 offset:{L_FL}")
        A(f"ds_write_b32 v13, v15 offset:{L_PR}")
        A("s_mov_b64 exec, -1")
        A(f"s_waitcnt vmcnt({DQ})")
        for j in range(4):
            A(f"v_lshlrev_b32 v{36+2*j}, 16, v{24+j}")
            A(f"v_and_b32 v{37+2*j}, 0xffff0000, v{24+j}")
        A("v_add_f32 v44, v36, v37")
        for j in range(2, 8):
            A(f"v_add_f32 v44, v44, v{36+j}")
        self.allreduce("v_add_f32", 44, 45)
        A("v_mul_f32 v44, 0x3b000000, v44")
        for j in range(8):
            A(f"v_sub_f32 v{36+j}, v{36+j}, v44")
        A("v_mul_f32 v46, v36, v36")
        for j in range(1, 8):
            A(f"v_fmac_f32 v46, v{36+j}, v{36+j}")
        self.allreduce("v_add_f32", 46, 45)
        A("v_mul_f32 v46, 0x3b000000, v46")
        self.round_bf16(44, 44)
        self.round_bf16(46, 46)
        A("v_add_f32 v46, 0x3727c5ac, v46")
        self.round_bf16(46, 46)
        A("v_sqrt_f32 v47, v46")
        A("s_nop 0")
        A("v_rcp_f32 v45, v47")
        A("v_fma_f32 v48, -v47, v47, v46")
        A("v_mul_f32 v45, 0.5, v45")
        A("v_fmac_f32 v47, v48, v45")
        self.round_bf16(47, 47)
        A("v_rcp_f32 v45, v47")
        for reg in (28, 29):
            A(f"v_lshlrev_b32 v{reg}, 16, v{reg}")
            A(f"v_sub_f32 v{reg}, v{reg}, v44")
            self.round_bf16(reg, reg)
            A(f"v_mul_f32 v48, v{reg}, v45")
            A(f"v_fma_f32 v49, -v48, v47, v{reg}")
            A(f"v_fmac_f32 v48, v49, v45")
            A(f"v_cvt_pk_bf16_f32 v{reg}, v48, 0")
        XL = (28, 29); XH = (30, 31)
        A("v_lshlrev_b32 v30, 16, v28")
        A("v_lshlrev_b32 v31, 16, v29")
        A("v_lshlrev_b32 v10, 2, v6")
        A(f"ds_write_b32 v10, v28 offset:{L_XN}")
        A(f"ds_write_b32 v10, v29 offset:{L_XN + 256}")
        for e in range(8):
            A(f"v_mov_b32 v{ACC[e]}, 0")
        self.stamp(2)
        for i in range(32):
            A(f"s_waitcnt vmcnt({min(DQ - 1, 31 - i)})")
            if i + DQ < 32: wq_issue(i + DQ)
            s = W0 + 4 * i
            for e in range(4):
                A(f"v_dot2c_f32_bf16_dpp v{ACC[2*e]}, v{XL[i>>4]}, v{s+e} row_newbcast:{i&15} {DPPF}")
                A(f"v_dot2c_f32_bf16_dpp v{ACC[2*e+1]}, v{XH[i>>4]}, v{s+e} row_newbcast:{i&15} {DPPF}")
        A("v_lshlrev_b32 v11, 3, v3")
        A("v_lshl_add_u32 v11, v4, 5, v11")
        A(f"s_lshl_b32 s{T0}, s{SHW}, 9")
        A(f"v_add_u32 v10, s{T0}, v11")
        self.reduce8_rows(ACC)
        A(f"ds_write_b64 v10, v[{ACC[0]}:{ACC[1]}] offset:{L_QP}")
        A("s_waitcnt lgkmcnt(0)")
        self.stamp(3)
        A("s_barrier")
        if self.helper_exit:
            for k in range(4, 9): self.stamp(k)
            self.write_stamps(9)
            A("s_endpgm")
        A("s_load_dwordx8 s[52:59], s[0:1], 48")
        A("s_load_dwordx2 s[46:47], s[0:1], 32")
        A(f"s_add_u32 s{STAG}, s{STAG}, 1")
        A(f"s_and_b32 s{T0}, s{STAG}, 0xff")
        A(f"v_mov_b32 v12, s{T0}")
        A(f"s_movk_i32 s{SFF}, 0xff")
        A("v_lshrrev_b32 v9, 3, v2")
        A(f"s_lshl_b32 s{T0}, s{SB}, 9")
        A(f"s_lshl_b32 s{T1}, s{SCG}, 3")
        A(f"s_add_u32 s{T0}, s{T0}, s{T1}")
        A(f"v_add_u32 v9, s{T0}, v9")
        A("v_lshlrev_b32 v9, 1, v9")
        A(f"buffer_load_ushort v14, v9, s[{XS}:{XS+3}], 0 offen")
        A("s_waitcnt lgkmcnt(0)")
        self.srd(WOS, 46, 0x400000)
        self.srd(WGS, 52, 512 * 2752)
        self.srd(WUS, 54, 512 * 2752)
        self.srd(WDS, 56, 1376 * 1024)
        self.srd(OUTS, 58, 4096)
        lnf = self.newlab("noffn")
        A(f"s_cmp_eq_u32 s{SHW}, {self.ffn_wave}"); A(f"s_cbranch_scc0 {lnf}")
        A(f"s_cmp_ge_u32 s{SU}, 43"); A(f"s_cbranch_scc1 {lnf}")
        if self.do_ffn: self.ffn_unit(WGS, WUS, WDS, WSS, SU, SB)
        self.lab(lnf)
        A("v_lshlrev_b32 v8, 11, v3")
        A("v_lshl_add_u32 v8, v4, 4, v8")
        A(f"s_lshl_b32 s{T0}, s{SH}, 17")
        A(f"s_lshl_b32 s{T1}, s{SHW}, 8")
        A(f"s_add_u32 s{T0}, s{T0}, s{T1}")
        A(f"v_add_u32 v8, s{T0}, v8")
        A(f"s_mov_b32 s{T4}, 0")
        A(f"s_mov_b32 s{T0}, 0x05040100")
        A(f"s_mov_b32 s{T1}, 0x07060302")
        P = [[None] * 8 for _ in range(16)]
        spare = [W0 + 128]
        def wo_issue(n):
            k, half = n >> 1, n & 1
            r0 = W0 + 8 * k + 4 * half
            A(f"buffer_load_dwordx4 v[{r0}:{r0+3}], v8, s[{WOS}:{WOS+3}], s{T4} offen offset:{1024*half} {self.woflags}")
            if half == 1 and k < 15: A(f"s_add_u32 s{T4}, s{T4}, 0x2000")
        def wo_consume(n):
            k, half = n >> 1, n & 1
            if half == 0: return
            for j in range(4):
                a, b_ = W0 + 8 * k + j, W0 + 8 * k + 4 + j
                A(f"v_perm_b32 v{spare[0]}, v{b_}, v{a}, s{T0}")
                A(f"v_perm_b32 v{a}, v{b_}, v{a}, s{T1}")
                P[k][2 * j] = spare[0]
                P[k][2 * j + 1] = a
                spare[0] = b_
        if self.do_wo:
            self.paced(32, self.DO, wo_issue, wo_consume)
        else:
            for k in range(16):
                for e in range(8): P[k][e] = W0 + 8 * k + e
        self.stamp(4)
        ljoin = self.newlab("join")
        A(f"s_cmp_eq_u32 s{SHW}, 1"); A(f"s_cbranch_scc0 {ljoin}")
        if self.do_exch: self.exchange(WSS, SB, SCG)
        self.lab(ljoin)
        if not self.do_tail:
            for k in range(5, 9): self.stamp(k)
            self.write_stamps(9)
            A("s_endpgm")
        self.stamp(5)
        A("s_waitcnt vmcnt(0) lgkmcnt(0)")
        A("s_barrier")
        self.stamp(6)
        A("v_mov_b32 v10, 0")
        A(f"ds_read_b128 v[24:27], v10 offset:{L_SC}")
        for w in range(4):
            A(f"ds_read_b64 v[{32+2*w}:{33+2*w}], v11 offset:{L_OP + 512*w}")
        for e in range(8):
            A(f"v_mov_b32 v{ACC[e]}, 0")
        A(f"s_lshl_b32 s{T0}, s2, 11")
        A(f"s_lshl_b32 s{T1}, s{SHW}, 9")
        A(f"s_add_u32 s{T0}, s{T0}, s{T1}")
        A("s_waitcnt lgkmcnt(0)")
        A("v_mul_f32 v28, v24, v32")
        A("v_mul_f32 v29, v24, v33")
        for w in range(1, 4):
            A(f"v_fmac_f32 v28, v{24+w}, v{32+2*w}")
            A(f"v_fmac_f32 v29, v{24+w}, v{33+2*w}")
        A("v_cvt_pk_bf16_f32 v28, v28, v29")
        A("s_nop 1")
        for k in range(16):
            for e in range(8):
                A(f"v_dot2c_f32_bf16_dpp v{ACC[e]}, v28, v{P[k][e]} row_newbcast:{k} {DPPF}")
        A("s_nop 2")
        self.reduce8_rows(ACC)
        self.tag(ACC[0]); self.tag(ACC[1])
        A(f"buffer_store_dwordx2 v[{ACC[0]}:{ACC[1]}], v11, s[{WSS}:{WSS+3}], s{T0} offen {self.pubflags}")
        self.stamp(7)
        lend = self.newlab("hend")
        A(f"s_cmp_eq_u32 s{SHW}, 0")
        A(f"s_cbranch_scc0 {lend}")
        if not self.do_final: A(f"s_branch {lend}")
        A("v_lshrrev_b32 v10, 3, v2")
        A("v_lshlrev_b32 v10, 2, v10")
        A(f"ds_read_b32 v24, v10 offset:{L_G}")
        A("v_lshlrev_b32 v10, 11, v2")
        A(f"s_lshl_b32 s{T0}, s{SB}, 17")
        A(f"s_lshl_b32 s{T1}, s{SCG}, 5")
        A(f"s_add_u32 s{T0}, s{T0}, s{T1}")
        self.poll(32, 8, 10, WSS, T0, self.fsleep)
        A("s_nop 1")
        self.reduce8_wave(list(range(32, 40)))
        A("s_waitcnt lgkmcnt(0)")
        self.round_bf16(32, 32)
        A("v_mul_f32 v32, v32, v24")
        self.round_bf16(32, 32)
        A("v_lshlrev_b32 v14, 16, v14")
        A("v_add_f32 v32, v14, v32")
        A("v_cvt_pk_bf16_f32 v32, v32, v32")
        A("v_and_b32 v10, 7, v2")
        A("v_cmp_eq_u32 vcc, 0, v10")
        A("s_nop 1")
        A(f"s_and_saveexec_b64 s[{T2}:{T3}], vcc")
        A(f"buffer_store_short v32, v9, s[{OUTS}:{OUTS+3}], 0 offen")
        A(f"s_mov_b64 exec, s[{T2}:{T3}]")
        A(f"s_and_b32 s{T0}, s2, 63")
        A(f"s_cmp_eq_u32 s{T0}, 0")
        A(f"s_cbranch_scc0 {lend}")
        A(f"v_mov_b32 v10, s{T5}")
        A(f"v_mov_b32 v13, s{STAG}")
        A("s_mov_b64 exec, 1")
        A(f"buffer_store_dword v13, v10, s[{WSS}:{WSS+3}], 0 offen")
        A("s_mov_b64 exec, -1")
        self.lab(lend)
        self.stamp(8)
        self.write_stamps(9)
        A("s_endpgm")

    def ffn_unit(self, WGS, WUS, WDS, WSS, SU, SB):
        A = self.A
        T0, T1, T2, T3, T4, T5 = self.T
        G = list(range(16, 24)); U = list(range(24, 32))
        LD = 200
        XV = 32
        for e in range(8):
            A(f"v_mov_b32 v{G[e]}, 0"); A(f"v_mov_b32 v{U[e]}, 0")
        A("v_lshrrev_b32 v40, 2, v2")
        A(f"s_movk_i32 s{T0}, 2752")
        A(f"v_mul_lo_u32 v41, v40, s{T0}")
        A("v_and_b32 v42, 3, v2")
        A("v_lshl_add_u32 v41, v42, 4, v41")
        A(f"s_lshl_b32 s{T1}, s{SU}, 6")
        A(f"v_add_u32 v41, s{T1}, v41")
        A("v_lshlrev_b32 v40, 2, v40")
        A(f"s_mov_b32 s{T4}, 0")
        A(f"s_mov_b32 s{T3}, 8")
        def f1_issue(j):
            A(f"buffer_load_dwordx4 v[{LD+8*j}:{LD+8*j+3}], v41, s[{WGS}:{WGS+3}], s{T4} offen {self.fflags}")
            A(f"buffer_load_dwordx4 v[{LD+8*j+4}:{LD+8*j+7}], v41, s[{WUS}:{WUS+3}], s{T4} offen {self.fflags}")
            A(f"s_add_u32 s{T4}, s{T4}, {16*2752}")
        def f1_consume(j):
            for e in range(4):
                A(f"v_dot2c_f32_bf16 v{G[2*e]}, v{XV+j}, v{LD+8*j+e}")
                A(f"v_dot2c_f32_bf16 v{G[2*e+1]}, v{XV+4+j}, v{LD+8*j+e}")
            for e in range(4):
                A(f"v_dot2c_f32_bf16 v{U[2*e]}, v{XV+j}, v{LD+8*j+4+e}")
                A(f"v_dot2c_f32_bf16 v{U[2*e+1]}, v{XV+4+j}, v{LD+8*j+4+e}")
        def f1_pre():
            for j in range(4):
                A(f"ds_read_b32 v{XV+j}, v40 offset:{L_XN + 64*j}")
            A("v_add_u32 v40, 256, v40")
            A("s_waitcnt lgkmcnt(0)")
            for j in range(4):
                A(f"v_lshlrev_b32 v{XV+4+j}, 16, v{XV+j}")
        lp = self.newlab("f1")
        self.lab(lp)
        self.paced(4, self.DF1, f1_issue, f1_consume, per=2, pre=f1_pre)
        A(f"s_sub_u32 s{T3}, s{T3}, 1")
        A(f"s_cmp_lg_u32 s{T3}, 0")
        A(f"s_cbranch_scc1 {lp}")
        A("s_nop 2")
        for e in range(8):
            A(f"v_permlane32_swap_b32 v{G[e]}, v{U[e]}")
        for e in range(8):
            A(f"v_add_f32 v{G[e]}, v{G[e]}, v{U[e]}")
        for e in range(4):
            A(f"v_permlane16_swap_b32 v{G[e]}, v{G[e+4]}")
        for e in range(4):
            A(f"v_add_f32 v{G[e]}, v{G[e]}, v{G[e+4]}")
        A("s_nop 0")
        for e in range(2):
            A(f"v_add_f32_dpp v{G[e]}, v{G[e]}, v{G[e]} row_ror:8 row_mask:0xf bank_mask:0x3")
            A(f"v_add_f32_dpp v{G[e]}, v{G[e+2]}, v{G[e+2]} row_ror:8 row_mask:0xf bank_mask:0xc")
        A("s_nop 1")
        A(f"v_add_f32_dpp v{G[0]}, v{G[0]}, v{G[0]} row_shl:4 row_mask:0xf bank_mask:0x5")
        A(f"v_add_f32_dpp v{G[0]}, v{G[1]}, v{G[1]} row_shr:4 row_mask:0xf bank_mask:0xa")
        A(f"v_mov_b32 v{U[0]}, v{G[0]}")
        A("s_nop 1")
        A(f"v_permlane32_swap_b32 v{G[0]}, v{U[0]}")
        self.round_bf16(G[0], G[0])
        self.round_bf16(U[0], U[0])
        x = G[0]
        A(f"v_mul_f32 v43, v{x}, v{x}")
        A(f"v_mul_f32 v43, v43, v{x}")
        A("v_mul_f32 v43, 0x3d372713, v43")
        A(f"v_add_f32 v43, v{x}, v43")
        A("v_mul_f32 v43, 0xc0135761, v43")
        A("v_exp_f32 v43, v43")
        A("s_nop 0")
        A("v_add_f32 v43, 1.0, v43")
        A("v_rcp_f32 v43, v43")
        A("s_nop 0")
        A(f"v_mul_f32 v43, v{x}, v43")
        self.round_bf16(43, 43)
        A(f"v_mul_f32 v43, v43, v{U[0]}")
        A("v_cvt_pk_bf16_f32 v43, v43, 0")
        A("v_and_b32 v44, 3, v2")
        A("v_lshlrev_b32 v44, 3, v44")
        A("v_bfe_u32 v45, v2, 2, 2")
        A("v_add_u32 v44, v44, v45")
        A("v_bfe_u32 v45, v2, 4, 1")
        A("v_lshl_add_u32 v44, v45, 2, v44")
        A("v_lshlrev_b32 v44, 2, v44")
        A("s_mov_b32 exec_hi, 0")
        A(f"ds_write_b32 v44, v43 offset:{L_HL}")
        A("s_mov_b32 exec_hi, -1")
        A("v_lshlrev_b32 v44, 2, v4")
        A(f"ds_read_b32 v32, v44 offset:{L_HL}")
        A(f"ds_read_b32 v33, v44 offset:{L_HL + 64}")
        for e in range(8):
            A(f"v_mov_b32 v{G[e]}, 0")
        A("s_waitcnt lgkmcnt(0)")
        A("v_lshlrev_b32 v34, 16, v32")
        A("v_lshlrev_b32 v35, 16, v33")
        A("v_lshlrev_b32 v41, 4, v2")
        A(f"s_lshl_b32 s{T4}, s{SU}, 15")
        def f2_issue(i):
            j = i % 8
            A(f"buffer_load_dwordx4 v[{LD+4*j}:{LD+4*j+3}], v41, s[{WDS}:{WDS+3}], s{T4} offen {self.fflags}")
            A(f"s_add_u32 s{T4}, s{T4}, 0x400")
        def f2_consume(i):
            j = i % 8
            for e in range(4):
                A(f"v_dot2c_f32_bf16_dpp v{G[2*e]}, v{32 + (i>>4)}, v{LD+4*j+e} row_newbcast:{i&15} {DPPF}")
                A(f"v_dot2c_f32_bf16_dpp v{G[2*e+1]}, v{34 + (i>>4)}, v{LD+4*j+e} row_newbcast:{i&15} {DPPF}")
        assert self.DF2 <= 7
        self.paced(32, self.DF2, f2_issue, f2_consume)
        A("s_nop 2")
        for e in range(8):
            self.tag(G[e])
        A(f"s_mul_i32 s{T0}, s{SB}, 43")
        A(f"s_add_u32 s{T0}, s{T0}, s{SU}")
        A(f"s_lshl_b32 s{T0}, s{T0}, 11")
        A(f"s_add_u32 s{T0}, s{T0}, {WS_Y2}")
        A("v_lshlrev_b32 v41, 5, v2")
        A(f"buffer_store_dwordx4 v[{G[0]}:{G[3]}], v41, s[{WSS}:{WSS+3}], s{T0} offen {self.pubflags}")
        A(f"buffer_store_dwordx4 v[{G[4]}:{G[7]}], v41, s[{WSS}:{WSS+3}], s{T0} offen offset:16 {self.pubflags}")

    def exchange(self, WSS, SB, SCG):
        A = self.A
        T0, T1, T2, T3, T4, T5 = self.T
        A("v_mov_b32 v10, 0")
        def test_flags():
            A(f"ds_read_b128 v[24:27], v10 offset:{L_FL}")
            A("s_waitcnt lgkmcnt(0)")
            A("v_bitop3_b32 v24, v24, v25, v26 bitop3:0x80")
            A("v_and_b32 v24, v24, v27")
            A("s_nop 0")
            A(f"v_readfirstlane_b32 s{T0}, v24")
            A("s_nop 3")
            A(f"s_cmp_eq_u32 s{T0}, 1")
        self.lds_wait(test_flags)
        A("v_and_b32 v13, 3, v2")
        A("v_lshlrev_b32 v13, 3, v13")
        A(f"ds_read_b64 v[24:25], v13 offset:{L_ML}")
        A("s_waitcnt lgkmcnt(0)")
        A(f"s_mov_b32 s{T1}, 0x3fb8aa3b")
        A(f"v_max_f32_dpp v26, v24, v24 quad_perm:[2,3,0,1] {DPPF}")
        A("s_nop 1")
        A(f"v_max_f32_dpp v26, v26, v26 quad_perm:[1,0,3,2] {DPPF}")
        A("v_sub_f32 v27, v24, v26")
        A(f"v_mul_f32 v27, s{T1}, v27")
        A("v_exp_f32 v27, v27")
        A("s_nop 0")
        A("v_mul_f32 v27, v27, v25")
        A("s_nop 1")
        A(f"v_add_f32_dpp v27, v27, v27 quad_perm:[2,3,0,1] {DPPF}")
        A("s_nop 1")
        A(f"v_add_f32_dpp v27, v27, v27 quad_perm:[1,0,3,2] {DPPF}")
        A("v_mov_b32 v28, v26")
        A("v_mov_b32 v29, v27")
        self.tag(28); self.tag(29)
        A("v_mov_b32 v30, v28")
        A("v_mov_b32 v31, v29")
        A("v_and_b32 v26, 0xffffff00, v26")
        A("v_and_b32 v27, 0xffffff00, v27")
        A(f"s_lshl_b32 s{T2}, s2, 7")
        A(f"s_add_u32 s{T2}, s{T2}, {WS_ML}")
        A("s_mov_b64 exec, 1")
        A(f"buffer_store_dwordx4 v[28:31], v10, s[{WSS}:{WSS+3}], s{T2} offen {self.pubflags}")
        A(f"buffer_store_dwordx4 v[28:31], v10, s[{WSS}:{WSS+3}], s{T2} offen offset:16 {self.pubflags}")
        A("s_mov_b64 exec, -1")
        def test_prog():
            A(f"ds_read_b32 v30, v10 offset:{L_PR}")
            A("s_waitcnt lgkmcnt(0)")
            A(f"v_readfirstlane_b32 s{T0}, v30")
            A("s_nop 3")
            A(f"s_cmp_le_u32 s{T0}, {15 - self.LG}")
        self.lds_wait(test_prog, sleep=16)
        A("v_lshlrev_b32 v10, 11, v2")
        A(f"s_mul_i32 s{T2}, s{SB}, {43*2048}")
        A(f"s_lshl_b32 s{T3}, s{SCG}, 5")
        A(f"s_add_u32 s{T2}, s{T2}, s{T3}")
        A(f"s_add_u32 s{T2}, s{T2}, {WS_Y2}")
        for e in range(8):
            A(f"v_mov_b32 v{32+e}, 0")
        A("s_mov_b32 exec_hi, 0x7ff")
        self.poll(32, 8, 10, WSS, T2, 16)
        A("s_nop 1")
        self.reduce8_wave(list(range(32, 40)))
        self.round_bf16(32, 32)
        A("v_mul_f32 v33, 0xbfb8aa3b, v32")
        A("v_exp_f32 v33, v33")
        A("s_nop 0")
        A("v_add_f32 v33, 1.0, v33")
        A("v_rcp_f32 v34, v33")
        A("s_nop 0")
        A("v_mul_f32 v35, v32, v34")
        self.round_bf16(35, 35)
        A("v_lshrrev_b32 v13, 3, v2")
        A("v_lshlrev_b32 v13, 2, v13")
        A(f"ds_write_b32 v13, v35 offset:{L_G}")
        A(f"s_xor_b32 s{T2}, s2, 32")
        A(f"s_lshl_b32 s{T2}, s{T2}, 7")
        A(f"s_add_u32 s{T2}, s{T2}, {WS_ML}")
        A("v_mov_b32 v10, 0")
        self.poll(44, 8, 10, WSS, T2, 16)
        A("v_mov_b32 v28, v44")
        A("v_mov_b32 v29, v45")
        A("v_max_f32 v30, v26, v28")
        A("v_sub_f32 v31, v26, v30"); A(f"v_mul_f32 v31, s{T1}, v31"); A("v_exp_f32 v31, v31")
        A("v_sub_f32 v40, v28, v30"); A(f"v_mul_f32 v40, s{T1}, v40"); A("v_exp_f32 v40, v40")
        A("v_sub_f32 v41, v24, v30"); A(f"v_mul_f32 v41, s{T1}, v41"); A("v_exp_f32 v41, v41")
        A("v_mul_f32 v31, v31, v27")
        A("v_fmac_f32 v31, v40, v29")
        A("v_rcp_f32 v40, v31")
        A("s_nop 0")
        A("v_mul_f32 v42, v41, v40")
        A("v_fma_f32 v43, -v42, v31, v41")
        A("v_fmac_f32 v42, v43, v40")
        A("v_and_b32 v13, 3, v2")
        A("v_lshlrev_b32 v13, 2, v13")
        A(f"ds_write_b32 v13, v42 offset:{L_SC}")

    def generate(self):
        A = self.A
        self.L.append(HEADER + f"; @launch grid=(256,1,1) block=(512,1,1) lds={self.lds_bytes}")
        self.L.append('.amdgcn_target "amdgcn-amd-amdhsa--gfx950"')
        self.L.append(".text")
        self.L.append(f".globl {KNAME}")
        self.L.append(".p2align 8")
        self.L.append(f".type {KNAME},@function")
        self.lab(KNAME)
        A("s_cmp_ge_u32 s2, 0x100")
        A("s_cbranch_scc1 L_exit")
        A("s_load_dwordx4 s[8:11], s[0:1], 8")
        A("v_lshrrev_b32 v1, 6, v0")
        A("v_and_b32 v2, 63, v0")
        self.stamp(0)
        A("v_readfirstlane_b32 s3, v1")
        A("s_nop 1")
        A("s_cmp_ge_u32 s3, 4")
        A("s_cbranch_scc1 L_helper")
        self.streamer()
        self.helper()
        self.lab("L_exit")
        A("s_endpgm")
        self.lab("L_code_end")
        body = [ln for ln in self.L if ln.startswith("  ") and not ln.strip().startswith(";")]
        kb = (len(body) * 8 + 1023) // 1024 + 1
        out = []
        for ln in self.L:
            if "PREFETCH_PLACEHOLDER" in ln:
                for i in range((kb + 31) // 32):
                    out.append(f"  v_min_u32 v13, L_code_end-{KNAME}-16, v10")
                    out.append("  global_load_dwordx4 v[196:199], v13, s[90:91]")
                    out.append("  v_add_u32 v10, 0x8000, v10")
            else:
                out.append(ln)
        self.L = out
        self.L.append('.section .rodata,"a"')
        self.L.append(".p2align 6")
        self.L.append(f".amdhsa_kernel {KNAME}")
        self.L.append("  .amdhsa_next_free_vgpr 240")
        self.L.append("  .amdhsa_next_free_sgpr 96")
        self.L.append("  .amdhsa_accum_offset 240")
        self.L.append("  .amdhsa_group_segment_fixed_size 0")
        self.L.append("  .amdhsa_kernarg_size 96")
        self.L.append("  .amdhsa_user_sgpr_count 2")
        self.L.append("  .amdhsa_user_sgpr_kernarg_segment_ptr 1")
        self.L.append("  .amdhsa_system_sgpr_workgroup_id_x 1")
        self.L.append("  .amdhsa_float_denorm_mode_32 3")
        self.L.append(".end_amdhsa_kernel")
        return "\n".join(self.L) + "\n"


if __name__ == "__main__":
    os.makedirs("out", exist_ok=True)
    names = []
    def add(name, **kw):
        txt = Gen(**kw).generate()
        build(txt, "out/" + name, KNAME)
        names.append("out/" + name)
    if len(sys.argv) > 1:
        exec(open(sys.argv[1]).read())
    else:
        add("v2")
    open("out/mlist.txt", "w").write("\n".join(names) + "\n")
    print(names)
```

```python
import sys, os
from common import build

KNAME = "recurrent_scan__mha_block_cached__geglu_ffn__decode_kernel"

HEADER = """; Kernarg layout for this problem (96 bytes, ptrs only, base s[0:1]):
;   offset  88: d_ws      1073741824 bytes workspace
;
; final combine.  Values handed between workgroups through d_ws carry an 8-bit tag in their low mantissa bits; the
; tag is one more than a per-batch word found in d_ws on entry (it only tells this launch's hand-offs from older
"""

WS_Y   = 0x00000
WS_ML  = 0x80000
WS_Y2  = 0x90000
WS_N   = 0xF0000
WS_DSEL = 0xF8000
WS_TT  = 0x100000
WS_SZ  = 0x140000
WS_TS  = 0x200000
L_SP  = 0x0000
L_QP  = 0x4000
L_OP  = 0x4800
L_XN  = 0x5000
L_ML  = 0x5800
L_FL  = 0x5820
L_PR  = 0x5830
L_SC  = 0x5840
L_G   = 0x5860
L_HL  = 0x5880
L_MK  = 0x5900
L_X4  = 0x6000
L_H4  = 0x5A00
L_KB  = 0x8000
DPPF = "row_mask:0xf bank_mask:0xf"


class Gen:
    def __init__(self, D=5, DF=5, B=48, BL=0, BT=16, DQ=3, DO=2, DF1=1, DF2=2, LG=12, ffn_wave=3,
                 kvflags="nt", wflags="nt", woflags="nt", fflags="nt", pubflags="sc1",
                 ts=False, prefetch_code=True, prio=True, spin_limit=1 << 16, fsleep=1,
                 do_ffn=True, do_wo=True, do_exch=True, do_tail=True, do_final=True, helper_exit=False,
                 skip_wq=False, DH=None, DL=None, mask=0, mask2=0, mask_src='const', tlbwarm=0, ts2=False, ctl=False, cps=((10,11,12,3),(14,17,18,4),(21,22,23,4),(26,27,28,3)), tau=40, bias=0, ctl_wave=2, csleep=8, nbud=8, ffn4=True, fpoll='simple', fs=(24, 32, 8, 8), nsets=2, stag=4, mark=False):
        self.__dict__.update(locals())
        del self.__dict__["self"]
        self.L = []
        self.uid = 0
        self.lds_bytes = L_KB + 4 * BL * 1024

    def A(self, s):
        self.L.append("  " + s)
    def lab(self, s):
        self.L.append(s + ":")
    def newlab(self, base):
        self.uid += 1
        return f"L_{base}_{self.uid}"

    def stamp(self, k):
        if self.ts:
            self.A(f"s_memrealtime s[{64+2*k}:{65+2*k}]")

    def write_stamps(self, n, extra=()):
        if not self.ts:
            return
        A = self.A
        A("s_load_dwordx2 s[40:41], s[0:1], 88")
        A("s_waitcnt lgkmcnt(0)")
        A(f"s_add_u32 s40, s40, {WS_TS}")
        A("s_addc_u32 s41, s41, 0")
        A("s_mov_b32 s42, 0x100000")
        A("s_mov_b32 s43, 0x20000")
        A("s_lshl_b32 s44, s2, 3")
        A("s_add_u32 s44, s44, s3")
        A("s_lshl_b32 s44, s44, 7")
        A("s_mov_b64 exec, 1")
        A("v_mov_b32 v1, 0")
        for k in range(n):
            A(f"v_mov_b32 v0, s{64+2*k}")
            A(f"buffer_store_dword v0, v1, s[40:43], s44 offen offset:{4*k}")
            A("s_nop 1")
        for k, r in enumerate(extra):
            A(f"v_mov_b32 v0, s{r}")
            A(f"buffer_store_dword v0, v1, s[40:43], s44 offen offset:{4*(16+k)}")
            A("s_nop 1")
        A("s_waitcnt vmcnt(0)")
        A("s_mov_b64 exec, -1")

    def srd(self, dst, src, size):
        A = self.A
        A(f"s_mov_b32 s{dst}, s{src}")
        A(f"s_mov_b32 s{dst+1}, s{src+1}")
        A(f"s_mov_b32 s{dst+2}, {size}")
        A(f"s_mov_b32 s{dst+3}, 0x20000")

    def paced(self, n, d, issue, consume, per=1, pre=None):
        d = min(d, n)
        for j in range(d):
            issue(j)
        if pre: pre()
        for j in range(d, n + d):
            k = j - d
            left = min(d - 1, n - 1 - k)
            self.A(f"s_waitcnt vmcnt({left * per})")
            if j < n: issue(j)
            consume(k)

    def reduce8_rows(self, a):
        A = self.A
        for e in range(4):
            A(f"v_permlane32_swap_b32 v{a[e]}, v{a[e+4]}")
        for e in range(4):
            A(f"v_add_f32 v{a[e]}, v{a[e]}, v{a[e+4]}")
        A("s_nop 0")
        A(f"v_permlane16_swap_b32 v{a[0]}, v{a[2]}")
        A(f"v_permlane16_swap_b32 v{a[1]}, v{a[3]}")
        A(f"v_add_f32 v{a[0]}, v{a[0]}, v{a[2]}")
        A(f"v_add_f32 v{a[1]}, v{a[1]}, v{a[3]}")

    def reduce8_wave(self, a):
        A = self.A
        self.reduce8_rows(a)
        A("s_nop 1")
        A(f"v_add_f32_dpp v{a[0]}, v{a[0]}, v{a[0]} row_ror:8 row_mask:0xf bank_mask:0x3")
        A(f"v_add_f32_dpp v{a[0]}, v{a[1]}, v{a[1]} row_ror:8 row_mask:0xf bank_mask:0xc")
        A("s_nop 1")
        A(f"v_add_f32_dpp v{a[0]}, v{a[0]}, v{a[0]} row_half_mirror {DPPF}")
        A("s_nop 1")
        A(f"v_add_f32_dpp v{a[0]}, v{a[0]}, v{a[0]} quad_perm:[2,3,0,1] {DPPF}")
        A("s_nop 1")
        A(f"v_add_f32_dpp v{a[0]}, v{a[0]}, v{a[0]} quad_perm:[1,0,3,2] {DPPF}")

    def allreduce(self, op, x, t):
        A = self.A
        for m in ("row_ror:8", "row_ror:4", "row_ror:2", "row_ror:1"):
            A("s_nop 1")
            A(f"{op}_dpp v{x}, v{x}, v{x} {m} {DPPF}")
        A(f"v_mov_b32 v{t}, v{x}")
        A("s_nop 1")
        A(f"v_permlane16_swap_b32 v{x}, v{t}")
        A(f"{op} v{x}, v{x}, v{t}")
        A(f"v_mov_b32 v{t}, v{x}")
        A("s_nop 1")
        A(f"v_permlane32_swap_b32 v{x}, v{t}")
        A(f"{op} v{x}, v{x}, v{t}")

    def round_bf16(self, dst, src):
        self.A(f"v_cvt_pk_bf16_f32 v{dst}, v{src}, v{src}")
        self.A(f"v_and_b32 v{dst}, 0xffff0000, v{dst}")

    def streamer(self):
        A, D, B, BL = self.A, self.D, self.B, self.BL
        VOFF, VLDS, VM, VL, VT = 3, 4, 5, 6, 7
        Q = [8, 9, 10, 11]
        T = list(range(12, 28))
        ACC = list(range(28, 36))
        PL, PH, PLN = 36, 37, 38
        VPRA, VPRV, VKB = 44, 45, 46
        R0, E0 = 48, 112
        assert 16 <= B <= 48 and B % 16 == 0 and BL in (0, 16, 32)
        KS, VS = 12, 16
        SBASE, SOFF, SCNT = 20, 21, 22
        M1, M2, SSC, SLG = 24, 26, 28, 29
        NF = B + BL

        self.lab("L_stream")
        A("s_and_b32 s23, s2, 7")
        A("s_bfe_u32 s30, s2, 0x20003")
        A("s_lshl_b32 s30, s30, 3")
        A("s_add_u32 s23, s23, s30")
        A("s_lshr_b32 s30, s2, 6")
        A("s_lshl_b32 s30, s30, 5")
        A("s_add_u32 s23, s23, s30")
        A("s_lshl_b32 s23, s23, 1")
        A("s_bfe_u32 s30, s2, 0x10005")
        A("s_add_u32 s23, s23, s30")
        A(f"s_lshl_b32 s{SBASE}, s23, 20")
        A("s_lshl_b32 s30, s3, 10")
        A(f"v_lshlrev_b32 v{VOFF}, 4, v2")
        A(f"v_add_u32 v{VOFF}, s30, v{VOFF}")
        A(f"s_mov_b32 s{SOFF}, s{SBASE}")
        if BL:
            A(f"s_mul_i32 s31, s3, {BL*1024}")
            A(f"s_add_u32 s31, s31, {L_KB}")
        A("s_waitcnt lgkmcnt(0)")
        if self.ts2: A("s_memrealtime s[80:81]")
        self.srd(KS, 8, 0x10000000)

        issued, consumed = [], set()
        state = {"next": 0, "done": -1}
        def is_lds(n): return B <= n < NF
        def slot(n):
            if n < 16: return R0 + 4 * n
            if n < B: return E0 + 4 * (n - 16)
            return R0 + 4 * (n % 16)
        def slot_free(n):
            if is_lds(n): return True
            s = slot(n)
            return not any(m < n and not is_lds(m) and slot(m) == s and m not in consumed for m in issued)
        def issue(n):
            assert n == state["next"]
            if n == 256:
                A(f"s_mov_b32 s{SOFF}, s{SBASE}")
            srd = KS if n < 256 else VS
            if is_lds(n):
                A(f"s_add_u32 m0, s31, {(n - B) * 1024}")
                A("s_nop 0")
                A(f"buffer_load_dwordx4 v{VOFF}, s[{srd}:{srd+3}], s{SOFF} offen {self.kvflags} lds")
            else:
                s = slot(n)
                A(f"buffer_load_dwordx4 v[{s}:{s+3}], v{VOFF}, s[{srd}:{srd+3}], s{SOFF} offen {self.kvflags}")
            A(f"s_add_u32 s{SOFF}, s{SOFF}, 0x1000")
            issued.append(n); state["next"] = n + 1
        def wait_for(n):
            if n <= state["done"]:
                return
            cnt = len(issued) - 1 - issued.index(n)
            assert cnt <= 63
            A(f"s_waitcnt vmcnt({cnt})")
            state["done"] = n
        def issue_upto(lim):
            while state["next"] <= lim and state["next"] < 512 and slot_free(state["next"]):
                issue(state["next"])

        for j in range(NF):
            if j >= self.DF:
                wait_for(j - self.DF)
            issue(j)
            if self.ts2 and j == self.DF - 1: A("s_memrealtime s[82:83]")
            if self.ts2 and j == self.DF: A("s_memrealtime s[84:85]")
            if j == 0:
                self.srd(VS, 10, 0x10000000)
            if j == 1:
                A(f"s_mov_b32 s{M1}, 0xaaaaaaaa"); A(f"s_mov_b32 s{M1+1}, 0xaaaaaaaa")
                A(f"s_mov_b32 s{M2}, 0xcccccccc"); A(f"s_mov_b32 s{M2+1}, 0xcccccccc")
                A(f"s_mov_b32 s{SSC}, 0x3db504f3"); A(f"s_mov_b32 s{SLG}, 0x3fb8aa3b")
            if j == 2:
                A("s_lshl_b32 s30, s3, 12")
                A(f"v_lshlrev_b32 v{VLDS}, 2, v2")
                A(f"v_add_u32 v{VLDS}, s30, v{VLDS}")
                A(f"v_mov_b32 v{VM}, 0xff800000")
                A("v_and_b32 v1, 15, v2")
                A("v_lshlrev_b32 v1, 5, v1")
                A("s_lshl_b32 s30, s3, 2")
                A(f"v_mov_b32 v{VPRA}, s30")
                if BL:
                    A(f"v_lshlrev_b32 v{VKB}, 4, v2")
                    A(f"v_add_u32 v{VKB}, s31, v{VKB}")
                if self.prio: A("s_setprio 2")
        if self.DH is not None and not self.ctl:
            if self.mask_src == 'ws':
                A("s_load_dwordx2 s[34:35], s[0:1], 88")
                A("s_waitcnt lgkmcnt(0)")
                A("s_lshl_b32 s32, s2, 2")
                A(f"s_add_u32 s32, s32, {WS_DSEL}")
                A("s_load_dword s33, s[34:35], s32")
                A("s_waitcnt lgkmcnt(0)")
            elif self.mask_src == 'ffn':
                A("s_bfe_u32 s32, s2, 0x30003")
                A("s_and_b32 s33, s2, 7")
                A("s_mul_i32 s33, s33, 6")
                A("s_add_u32 s33, s33, s32")
                A("s_cmp_ge_u32 s32, 6")
                A("s_cselect_b32 s33, 63, s33")
                if self.ffn4:
                    A("s_and_b32 s32, s32, 3")
                    A("s_lshr_b32 s35, s2, 6")
                    A("s_cmp_lg_u32 s32, s35")
                    A("s_cselect_b32 s33, 63, s33")
                A("s_cmp_lt_u32 s33, 43")
                A(f"s_cselect_b32 s33, {self.mask}, {self.mask2}")
            else:
                A(f"s_mov_b32 s33, {self.mask}")
        self.stamp(1)
        A("s_barrier")
        self.stamp(2)
        for hw in range(4):
            A(f"ds_read_b128 v[{12+8*hw}:{15+8*hw}], v1 offset:{L_QP + hw*512}")
            A(f"ds_read_b128 v[{16+8*hw}:{19+8*hw}], v1 offset:{L_QP + hw*512 + 16}")
        A("s_waitcnt lgkmcnt(4)")
        for e in range(8):
            A(f"v_add_f32 v{12+e}, v{12+e}, v{20+e}")
        A("s_waitcnt lgkmcnt(0)")
        for e in range(8):
            A(f"v_add_f32 v{28+e}, v{28+e}, v{36+e}")
        for e in range(8):
            A(f"v_add_f32 v{12+e}, v{12+e}, v{28+e}")
        for e in range(4):
            A(f"v_cvt_pk_bf16_f32 v{Q[e]}, v{12+2*e}, v{13+2*e}")

        DH = self.DH
        SMASK = 33
        sw = DH is not None
        kk = (DH - D) if sw else 0

        def k_dots(i, s):
            A(f"v_dot2_f32_bf16 v{T[i]}, v{s}, v{Q[0]}, 0")
            for e in range(1, 4):
                A(f"v_dot2_f32_bf16 v{T[i]}, v{s+e}, v{Q[e]}, v{T[i]}")
        def v_dots(i, s):
            for e in range(4):
                A(f"v_dot2c_f32_bf16_dpp v{ACC[2*e]}, v{PL}, v{s+e} row_newbcast:{i} {DPPF}")
                A(f"v_dot2c_f32_bf16_dpp v{ACC[2*e+1]}, v{PH}, v{s+e} row_newbcast:{i} {DPPF}")
        def k_end():
            A("s_nop 0")
            A(f"v_add_f32_dpp v{T[7]}, v{T[7]}, v{T[7]} row_ror:8 row_mask:0xf bank_mask:0x3")
            A(f"v_add_f32_dpp v{T[7]}, v{T[15]}, v{T[15]} row_ror:8 row_mask:0xf bank_mask:0xc")
            for k in range(4):
                A(f"v_add_f32_dpp v{T[k]}, v{T[k]}, v{T[k]} row_half_mirror row_mask:0xf bank_mask:0x5")
                A(f"v_add_f32_dpp v{T[k]}, v{T[k+4]}, v{T[k+4]} row_half_mirror row_mask:0xf bank_mask:0xa")
            A("s_nop 0")
            for k in range(4):
                A(f"v_add_f32_dpp v{T[k]}, v{T[k]}, v{T[k]} quad_perm:[2,3,0,1] {DPPF}")
            A(f"v_cndmask_b32_e64 v{T[0]}, v{T[0]}, v{T[2]}, s[{M2}:{M2+1}]")
            A(f"v_cndmask_b32_e64 v{T[1]}, v{T[1]}, v{T[3]}, s[{M2}:{M2+1}]")
            A("s_nop 0")
            A(f"v_add_f32_dpp v{T[0]}, v{T[0]}, v{T[0]} quad_perm:[1,0,3,2] {DPPF}")
            A(f"v_add_f32_dpp v{T[1]}, v{T[1]}, v{T[1]} quad_perm:[1,0,3,2] {DPPF}")
            A(f"v_cndmask_b32_e64 v{T[0]}, v{T[0]}, v{T[1]}, s[{M1}:{M1+1}]")
            self.round_bf16(T[0], T[0])
            A(f"v_mul_f32 v{T[0]}, s{SSC}, v{T[0]}")
            self.round_bf16(T[0], T[0])
            A(f"v_max_f32 v{VM}, v{VM}, v{T[0]}")
            A(f"ds_write_b32 v{VLDS}, v{T[0]} offset:{L_SP}")
            A(f"v_add_u32 v{VLDS}, 0x100, v{VLDS}")
        def k_extra(i):
            if i >= 9:
                k = i - 9
                A(f"v_add_f32_dpp v{T[k]}, v{T[k]}, v{T[k]} row_ror:8 row_mask:0xf bank_mask:0x3")
                A(f"v_add_f32_dpp v{T[k]}, v{T[k+8]}, v{T[k+8]} row_ror:8 row_mask:0xf bank_mask:0xc")
        VMK = 47
        ctl = self.ctl
        def v_pre(last):
            if not last:
                A(f"v_add_u32 v{VLDS}, 0x100, v{VLDS}")
                A(f"ds_read_b32 v{PLN}, v{VLDS} offset:{L_SP}")
        def mask_read():
            if ctl: A(f"ds_read_b32 v{VMK}, v{VPRA} offset:{L_MK}")
        def head(kind):
            A(f"s_sub_u32 s34, {15 + (16 if kind == 'v' else 0)}, s{SCNT}")
            if ctl:
                if kind == "k": A("s_waitcnt lgkmcnt(1)")
                A(f"v_readfirstlane_b32 s{SMASK}, v{VMK}")
            if kind == "v": v_pre(False)
            mask_read()
            if kind == "v" or ctl:
                A(f"v_mov_b32 v{VPRV}, s34")
                A(f"ds_write_b32 v{VPRA}, v{VPRV} offset:{L_PR}")
        def v_end(last):
            if not last:
                A("s_waitcnt lgkmcnt(0)")
                A(f"v_mov_b32 v{PL}, v{PLN}")
                A(f"v_lshlrev_b32 v{PH}, 16, v{PLN}")

        def steps(kind, g, d, first=0, labels=None):
            base = 16 * g + (256 if kind == "v" else 0)
            lds_group = kind == "k" and is_lds(base)
            if lds_group:
                wait_for(base + 15)
                for i in range(16):
                    s = E0 + 4 * i
                    A(f"ds_read_b128 v[{s}:{s+3}], v{VKB} offset:{(base - B + i) * 1024}")
            for i in range(first, 16):
                n = base + i
                if labels and i in labels: self.lab(labels[i])
                if not lds_group: wait_for(n)
                lim = n + d
                if n < NF: lim = max(lim, NF + d - 1)
                issue_upto(lim)
                if lds_group:
                    A(f"s_waitcnt lgkmcnt({15 - i})")
                    s = E0 + 4 * i
                else:
                    s = slot(n)
                (k_dots if kind == "k" else v_dots)(i, s)
                consumed.add(n)
                if kind == "k": k_extra(i)

        def snapshot(): return (list(issued), set(consumed), dict(state))
        def restore(sn):
            issued[:] = sn[0]; consumed.clear(); consumed.update(sn[1]); state.update(sn[2])
        def forward(kind, g_from, g_to, d):
            off = 256 if kind == "v" else 0
            for n in range(state["next"], off + 16 * g_to + d): issued.append(n)
            for n in range(off + 16 * g_from, off + 16 * g_to): consumed.add(n)
            state["next"] = off + 16 * g_to + d
            state["done"] = off + 16 * g_to - 1

        def sel_test(kind):
            A(f"s_bitcmp1_b32 s{SMASK}, s34")

        def phase_loop(kind, g0, sfx):
            pre = lambda: head(kind)
            end = (lambda: v_end(False)) if kind == "v" else k_end
            dots = k_dots if kind == "k" else v_dots
            off = 256 if kind == "v" else 0
            assert state["next"] == off + 16 * g0 + D, (kind, state["next"])
            A(f"s_mov_b32 s{SCNT}, {15 - g0}")
            Llo, Lhi, Llo1, Lhib = f"L_{kind}lo{sfx}", f"L_{kind}hi{sfx}", f"L_{kind}lo_k{sfx}", f"L_{kind}hib{sfx}"
            Lx, Lup, Ldn, Lxh = f"L_{kind}x{sfx}", f"L_{kind}up{sfx}", f"L_{kind}dn{sfx}", f"L_{kind}xh{sfx}"
            sn0 = snapshot()
            self.lab(Llo)
            pre()
            if sw:
                sel_test(kind)
                A(f"s_cbranch_scc1 {Lup}")
            steps(kind, g0, D, labels={kk: Llo1} if sw else None)
            end()
            A(f"s_sub_u32 s{SCNT}, s{SCNT}, 1")
            A(f"s_cmp_lg_u32 s{SCNT}, 0")
            A(f"s_cbranch_scc1 {Llo}")
            if sw:
                A(f"s_branch {Lx}")
                restore(sn0)
                self.lab(Lup)
                issue_upto(off + 16 * g0 + DH - 1)
                snh = snapshot()
                A(f"s_branch {Lhib}")
                self.lab(Lhi)
                pre()
                sel_test(kind)
                A(f"s_cbranch_scc0 {Ldn}")
                self.lab(Lhib)
                steps(kind, g0, DH)
                end()
                A(f"s_sub_u32 s{SCNT}, s{SCNT}, 1")
                A(f"s_cmp_lg_u32 s{SCNT}, 0")
                A(f"s_cbranch_scc1 {Lhi}")
                A(f"s_branch {Lxh}")
                restore(snh)
                self.lab(Ldn)
                for i in range(kk):
                    n = off + 16 * g0 + i
                    wait_for(n); dots(i, slot(n)); consumed.add(n)
                A(f"s_branch {Llo1}")
                restore(snh)
                self.lab(Lxh)
                for i in range(kk):
                    n = off + 16 * g0 + i
                    wait_for(n); dots(i, slot(n)); consumed.add(n)
                A(f"s_branch L_{kind}15_k{sfx}")
                self.lab(Lx)
            restore(sn0)
            forward(kind, g0, 15, D)

        npeel = max(2, NF // 16)
        for g in range(npeel):
            if g == npeel - 1: mask_read()
            steps("k", g, D); k_end()
        self.stamp(3)
        phase_loop("k", npeel, "")
        steps("k", 15, D, labels={kk: "L_k15_k"} if sw else None); k_end()
        self.stamp(4)
        issue_upto(256 + self.BT - 1)
        A(f"v_add_u32 v{VLDS}, 0xfffff000, v{VLDS}")
        for g in range(16):
            A(f"ds_read_b32 v{T[g]}, v{VLDS} offset:{L_SP + 256*g}")
        self.allreduce("v_max_f32", VM, VT)
        A(f"v_mov_b32 v{VL}, 0")
        for g in range(16):
            A(f"s_waitcnt lgkmcnt({15 - g})")
            A(f"v_sub_f32 v{T[g]}, v{T[g]}, v{VM}")
            A(f"v_mul_f32 v{T[g]}, s{SLG}, v{T[g]}")
            A(f"v_exp_f32 v{T[g]}, v{T[g]}")
            if g > 0:
                A(f"v_add_f32 v{VL}, v{VL}, v{T[g-1]}")
                A(f"v_cvt_pk_bf16_f32 v{T[g-1]}, v{T[g-1]}, 0")
        A("s_nop 0")
        A(f"v_add_f32 v{VL}, v{VL}, v{T[15]}")
        A(f"v_cvt_pk_bf16_f32 v{T[15]}, v{T[15]}, 0")
        for g in range(1, 16):
            A(f"ds_write_b32 v{VLDS}, v{T[g]} offset:{L_SP + 256*g}")
        A(f"v_mov_b32 v{PL}, v{T[0]}")
        A(f"v_lshlrev_b32 v{PH}, 16, v{T[0]}")
        self.allreduce("v_add_f32", VL, VT)
        A(f"v_lshlrev_b32 v1, 1, v{VPRA}")
        A(f"v_mov_b32 v40, v{VM}")
        A(f"v_mov_b32 v41, v{VL}")
        A("v_mov_b32 v42, 1")
        A("s_mov_b64 exec, 1")
        A(f"ds_write_b64 v1, v[40:41] offset:{L_ML}")
        A(f"ds_write_b32 v{VPRA}, v42 offset:{L_FL}")
        A("s_mov_b64 exec, -1")
        for e in range(8):
            A(f"v_mov_b32 v{ACC[e]}, 0")
        self.stamp(5)
        A("s_nop 1")
        v_pre(False); mask_read(); steps("v", 0, D); v_end(False)
        phase_loop("v", 1, "")
        DL = self.DL if self.DL else D
        steps("v", 15, D, labels={kk: "L_v15_k"} if sw else None)
        self.stamp(6)
        A("v_lshrrev_b32 v1, 4, v2")
        A("v_and_b32 v7, 15, v2")
        A("v_lshlrev_b32 v1, 3, v1")
        A("v_lshl_add_u32 v1, v7, 5, v1")
        A("s_lshl_b32 s30, s3, 9")
        A("v_add_u32 v1, s30, v1")
        self.reduce8_rows(ACC)
        A(f"ds_write_b64 v1, v[{ACC[0]}:{ACC[1]}] offset:{L_OP}")
        A("s_waitcnt lgkmcnt(0)")
        A("s_barrier")
        self.stamp(7)
        self.write_stamps(11 if self.ts2 else 8)
        A("s_endpgm")

    def tag(self, reg):
        self.A(f"v_bfi_b32 v{reg}, s{self.SFF}, v12, v{reg}")

    def timeout_mark(self, code):
        if not self.mark: return
        A = self.A
        l = self.newlab("nomark")
        A("s_cmp_eq_u32 s60, -1")
        A(f"s_cbranch_scc0 {l}")
        A("s_load_dwordx2 s[90:91], s[0:1], 80")
        A("s_waitcnt lgkmcnt(0)")
        A(f"v_mov_b32 v15, {4 * code}")
        A("v_mov_b32 v13, 0xdead")
        A("global_store_dword v15, v13, s[90:91]")
        self.lab(l)

    def poll(self, dst, n, voff, srd, soff, sleep, code=1):
        A = self.A
        lp = self.newlab("poll"); dn = self.newlab("polldone")
        A(f"s_mov_b32 s60, {self.spin_limit}")
        self.lab(lp)
        if n == 8:
            A(f"buffer_load_dwordx4 v[{dst}:{dst+3}], v{voff}, s[{srd}:{srd+3}], s{soff} offen sc1")
            A(f"buffer_load_dwordx4 v[{dst+4}:{dst+7}], v{voff}, s[{srd}:{srd+3}], s{soff} offen offset:16 sc1")
            A("s_waitcnt vmcnt(0)")
            A(f"v_bitop3_b32 v15, v{dst}, v{dst+1}, v{dst+2} bitop3:0x80")
            A(f"v_or3_b32 v13, v{dst}, v{dst+1}, v{dst+2}")
            A(f"v_bitop3_b32 v15, v15, v{dst+3}, v{dst+4} bitop3:0x80")
            A(f"v_or3_b32 v13, v13, v{dst+3}, v{dst+4}")
            A(f"v_bitop3_b32 v15, v15, v{dst+5}, v{dst+6} bitop3:0x80")
            A(f"v_or3_b32 v13, v13, v{dst+5}, v{dst+6}")
            A(f"v_and_b32 v15, v15, v{dst+7}")
            A(f"v_or_b32 v13, v13, v{dst+7}")
        else:
            assert n == 2
            A(f"buffer_load_dwordx2 v[{dst}:{dst+1}], v{voff}, s[{srd}:{srd+3}], s{soff} offen sc1")
            A("s_waitcnt vmcnt(0)")
            A(f"v_and_b32 v15, v{dst}, v{dst+1}")
            A(f"v_or_b32 v13, v{dst}, v{dst+1}")
        A("v_bitop3_b32 v15, v15, v13, v12 bitop3:0x7e")
        A("v_and_b32 v15, 0xff, v15")
        A("v_cmp_ne_u32 vcc, 0, v15")
        A("s_sub_u32 s60, s60, 1")
        A(f"s_cbranch_scc1 {dn}")
        A("s_and_b64 exec, exec, vcc")
        A(f"s_cbranch_scc0 {dn}")
        A(f"s_sleep {sleep}")
        A(f"s_branch {lp}")
        self.lab(dn)
        A("s_mov_b64 exec, -1")
        self.timeout_mark(code)
        for e in range(n):
            A(f"v_and_b32 v{dst+e}, 0xffffff00, v{dst+e}")

    def poll_final(self, dst, voff, srd, soff):
        A = self.A
        T0, T1, T2, T3, T4, T5 = self.T
        hi_cnt, hi_sleep, mid_cnt, mid_sleep = self.fs
        PEND, OKM = 92, 94
        NS = self.nsets
        sets = [40 + 8 * k for k in range(NS)]
        def issue(r):
            A(f"buffer_load_dwordx4 v[{r}:{r+3}], v{voff}, s[{srd}:{srd+3}], s{soff} offen sc1")
            A(f"buffer_load_dwordx4 v[{r+4}:{r+7}], v{voff}, s[{srd}:{srd+3}], s{soff} offen offset:16 sc1")
        def check(r, done):
            A(f"v_bitop3_b32 v15, v{r}, v{r+1}, v{r+2} bitop3:0x80")
            A(f"v_or3_b32 v13, v{r}, v{r+1}, v{r+2}")
            A(f"v_bitop3_b32 v15, v15, v{r+3}, v{r+4} bitop3:0x80")
            A(f"v_or3_b32 v13, v13, v{r+3}, v{r+4}")
            A(f"v_bitop3_b32 v15, v15, v{r+5}, v{r+6} bitop3:0x80")
            A(f"v_or3_b32 v13, v13, v{r+5}, v{r+6}")
            A(f"v_and_b32 v15, v15, v{r+7}")
            A(f"v_or_b32 v13, v13, v{r+7}")
            A("v_bitop3_b32 v15, v15, v13, v12 bitop3:0x7e")
            A("v_and_b32 v15, 0xff, v15")
            A("v_cmp_ne_u32 vcc, 0, v15")
            A("s_nop 1")
            A(f"s_andn2_b64 s[{OKM}:{OKM+1}], exec, vcc")
            A(f"s_and_b64 s[{PEND}:{PEND+1}], exec, vcc")
            A(f"s_mov_b64 exec, s[{OKM}:{OKM+1}]")
            lsk = self.newlab("nomove")
            A(f"s_cbranch_execz {lsk}")
            for e in range(8):
                A(f"v_and_b32 v{dst+e}, 0xffffff00, v{r+e}")
            self.lab(lsk)
            A(f"s_mov_b64 exec, s[{PEND}:{PEND+1}]")
            A(f"s_cbranch_execz {done}")
        slow = self.newlab("fslow"); fast = self.newlab("ffast"); done = self.newlab("fdone"); floop = self.newlab("floop")
        l1 = self.newlab("fs1"); l2 = self.newlab("fs2")
        A(f"s_mov_b32 s60, {self.spin_limit}")
        self.lab(slow)
        issue(sets[0])
        A("s_waitcnt vmcnt(0)")
        check(sets[0], done)
        A("s_sub_u32 s60, s60, 1")
        A(f"s_cbranch_scc1 {done}")
        A(f"s_bcnt1_i32_b64 s{T2}, exec")
        A(f"s_cmp_lt_u32 s{T2}, {mid_cnt}")
        A(f"s_cbranch_scc1 {fast}")
        A(f"s_cmp_lt_u32 s{T2}, {hi_cnt}")
        A(f"s_cbranch_scc1 {l1}")
        A(f"s_sleep {hi_sleep}")
        A(f"s_branch {slow}")
        self.lab(l1)
        A(f"s_sleep {mid_sleep}")
        A(f"s_branch {slow}")
        self.lab(fast)
        for k in range(NS):
            issue(sets[k])
            if k < NS - 1: A(f"s_sleep {self.stag}")
        self.lab(floop)
        for k in range(NS):
            A(f"s_waitcnt vmcnt({2 * (NS - 1)})")
            check(sets[k], done)
            issue(sets[k])
        A("s_sub_u32 s60, s60, 1")
        A(f"s_cbranch_scc0 {floop}")
        self.lab(done)
        A("s_mov_b64 exec, -1")
        self.timeout_mark(4)

    def lds_wait(self, emit_read_and_test, sleep=8):
        A = self.A
        lp = self.newlab("ldsw"); ld = self.newlab("ldsd")
        A(f"s_mov_b32 s60, {self.spin_limit}")
        self.lab(lp)
        emit_read_and_test()
        A(f"s_cbranch_scc1 {ld}")
        A("s_sub_u32 s60, s60, 1")
        A(f"s_cbranch_scc1 {ld}")
        A(f"s_sleep {sleep}")
        A(f"s_branch {lp}")
        self.lab(ld)
        self.timeout_mark(5)

    def helper(self):
        A = self.A
        XS, WQS, WOS, WGS, WUS, WDS, OUTS, WSS = 12, 16, 16, 20, 24, 28, 32, 40
        SH, SB, SHW, SCG, SU, STAG, SFF = 61, 62, 63, 4, 5, 6, 7
        T0, T1, T2, T3, T4, T5 = 84, 85, 86, 87, 88, 89
        self.T = (T0, T1, T2, T3, T4, T5)
        self.SFF, self.STAG = SFF, STAG
        W0 = 64
        ACC = list(range(16, 24))
        self.lab("L_helper")
        A("s_load_dwordx2 s[44:45], s[0:1], 0")
        A("s_load_dwordx2 s[46:47], s[0:1], 24")
        A("s_load_dwordx2 s[50:51], s[0:1], 88")
        A(f"s_sub_u32 s{SHW}, s3, 4")
        if self.prefetch_code:
            lnp = self.newlab("nopf")
            A(f"s_cmp_eq_u32 s{SHW}, 3")
            A(f"s_cbranch_scc0 {lnp}")
            A("s_getpc_b64 s[90:91]")
            self.lab("L_pc_ref")
            A(f"s_sub_u32 s90, s90, L_pc_ref-{KNAME}")
            A("s_subb_u32 s91, s91, 0")
            A(f"s_lshr_b32 s{T0}, s2, 3")
            A(f"s_lshl_b32 s{T0}, s{T0}, 10")
            A("v_lshlrev_b32 v10, 4, v2")
            A(f"v_add_u32 v10, s{T0}, v10")
            A("PREFETCH_PLACEHOLDER")
            self.lab(lnp)
        A(f"s_and_b32 s{SH}, s2, 7")
        A(f"s_bfe_u32 s{T0}, s2, 0x20003")
        A(f"s_lshl_b32 s{T0}, s{T0}, 3")
        A(f"s_add_u32 s{SH}, s{SH}, s{T0}")
        A(f"s_lshr_b32 s{SB}, s2, 6")
        A(f"s_and_b32 s{SCG}, s2, 7")
        A(f"s_lshl_b32 s{SCG}, s{SCG}, 3")
        A(f"s_bfe_u32 s{T0}, s2, 0x30003")
        A(f"s_add_u32 s{SCG}, s{SCG}, s{T0}")
        A(f"s_and_b32 s{SU}, s2, 7")
        A(f"s_mul_i32 s{SU}, s{SU}, 6")
        A(f"s_add_u32 s{SU}, s{SU}, s{T0}")
        A(f"s_cmp_ge_u32 s{T0}, 6")
        A(f"s_cselect_b32 s{SU}, 63, s{SU}")
        if self.ffn4:
            A(f"s_and_b32 s{T0}, s{T0}, 3")
            A(f"s_cmp_lg_u32 s{T0}, s{SB}")
            A(f"s_cselect_b32 s{SU}, 63, s{SU}")
        A("v_lshrrev_b32 v3, 4, v2")
        A("v_and_b32 v4, 15, v2")
        A(f"s_lshl_b32 s{T1}, s{SB}, 10")
        A("v_lshlrev_b32 v5, 4, v2")
        A(f"v_add_u32 v5, s{T1}, v5")
        A(f"s_lshl_b32 s{T2}, s{SHW}, 7")
        A("v_lshl_add_u32 v6, v4, 2, v3")
        A(f"v_add_u32 v6, s{T2}, v6")
        A("v_lshlrev_b32 v7, 1, v6")
        A(f"v_add_u32 v7, s{T1}, v7")
        A(f"v_add_u32 v8, s{T2}, v3")
        A("v_lshlrev_b32 v8, 13, v8")
        A(f"s_lshl_b32 s{T3}, s{SH}, 8")
        A(f"v_lshl_add_u32 v10, v4, 4, s{T3}")
        A("v_add_u32 v8, v8, v10")
        A(f"s_lshl_b32 s{T5}, s{SB}, 7")
        A(f"s_add_u32 s{T5}, s{T5}, {WS_N}")
        A("s_waitcnt lgkmcnt(0)")
        A(f"s_load_dword s{STAG}, s[50:51], s{T5}")
        self.srd(XS, 44, 4096)
        self.srd(WQS, 46, 0 if self.skip_wq else 0x400000)
        A(f"buffer_load_dwordx4 v[24:27], v5, s[{XS}:{XS+3}], 0 offen")
        A(f"buffer_load_ushort v28, v7, s[{XS}:{XS+3}], 0 offen")
        A(f"buffer_load_ushort v29, v7, s[{XS}:{XS+3}], 0 offen offset:128")
        A(f"s_mov_b32 s{T4}, 0")
        def wq_issue(i):
            A(f"buffer_load_dwordx4 v[{W0+4*i}:{W0+4*i+3}], v8, s[{WQS}:{WQS+3}], s{T4} offen {self.wflags}")
            if i < 31: A(f"s_add_u32 s{T4}, s{T4}, 0x8000")
        DQ = self.DQ
        for i in range(DQ):
            wq_issue(i)
        self.srd(WSS, 50, WS_SZ)
        nwarm = 0
        if self.tlbwarm:
            lw = self.newlab("nowarm")
            A(f"s_cmp_eq_u32 s{SHW}, 2"); A(f"s_cbranch_scc0 {lw}")
            A("s_load_dwordx2 s[52:53], s[0:1], 16")
            A("s_load_dwordx2 s[54:55], s[0:1], 32")
            A("s_load_dwordx4 s[56:59], s[0:1], 48")
            A("s_load_dwordx4 s[92:95], s[0:1], 64")
            A(f"s_lshl_b32 s{T0}, s{SB}, 5"); A(f"s_add_u32 s{T0}, s{T0}, s{SH}"); A(f"s_lshl_b32 s{T0}, s{T0}, 1")
            A(f"s_bfe_u32 s{T1}, s2, 0x10005"); A(f"s_add_u32 s{T0}, s{T0}, s{T1}"); A(f"s_lshl_b32 s{T0}, s{T0}, 20")
            A(f"v_mov_b32 v50, s{T0}")
            A(f"s_lshl_b32 s{T1}, s{SH}, 17"); A(f"v_mov_b32 v51, s{T1}")
            A("v_mov_b32 v52, 0")
            A(f"s_lshl_b32 s{T1}, s2, 11"); A(f"v_mov_b32 v53, s{T1}")
            A("s_waitcnt lgkmcnt(0)")
            A("s_mov_b64 exec, 1")
            A("global_load_dword v54, v50, s[52:53] nt")
            A("global_load_dword v55, v51, s[54:55] nt")
            A("global_load_dword v56, v52, s[56:57] nt")
            A("global_load_dword v57, v52, s[58:59] nt")
            A("global_load_dword v58, v52, s[92:93] nt")
            A("global_load_dword v59, v52, s[94:95] nt")
            A("global_load_dword v60, v53, s[50:51] nt")
            A("s_mov_b64 exec, -1")
            self.lab(lw)
        self.stamp(1)
        A("v_mov_b32 v12, 0")
        if self.ctl and self.mask_src == 'ffn':
            A(f"s_cmp_lt_u32 s{SU}, 43")
            A(f"s_cselect_b32 s{T0}, {self.mask}, {self.mask2}")
            A(f"v_mov_b32 v15, s{T0}")
        else:
            A(f"v_mov_b32 v15, {self.mask if self.ctl else 0}")
        A("v_lshlrev_b32 v13, 2, v2")
        A("s_mov_b64 exec, 15")
        A(f"ds_write_b32 v13, v12 offset:{L_FL}")
        A(f"ds_write_b32 v13, v12 offset:{L_PR}")
        A(f"ds_write_b32 v13, v15 offset:{L_MK}")
        A("s_mov_b64 exec, -1")
        A(f"s_waitcnt vmcnt({DQ})")
        for j in range(4):
            A(f"v_lshlrev_b32 v{36+2*j}, 16, v{24+j}")
            A(f"v_and_b32 v{37+2*j}, 0xffff0000, v{24+j}")
        A("v_add_f32 v44, v36, v37")
        for j in range(2, 8):
            A(f"v_add_f32 v44, v44, v{36+j}")
        self.allreduce("v_add_f32", 44, 45)
        A("v_mul_f32 v44, 0x3b000000, v44")
        for j in range(8):
            A(f"v_sub_f32 v{36+j}, v{36+j}, v44")
        A("v_mul_f32 v46, v36, v36")
        for j in range(1, 8):
            A(f"v_fmac_f32 v46, v{36+j}, v{36+j}")
        self.allreduce("v_add_f32", 46, 45)
        A("v_mul_f32 v46, 0x3b000000, v46")
        self.round_bf16(44, 44)
        self.round_bf16(46, 46)
        A("v_add_f32 v46, 0x3727c5ac, v46")
        self.round_bf16(46, 46)
        A("v_sqrt_f32 v47, v46")
        A("s_nop 0")
        A("v_rcp_f32 v45, v47")
        A("v_fma_f32 v48, -v47, v47, v46")
        A("v_mul_f32 v45, 0.5, v45")
        A("v_fmac_f32 v47, v48, v45")
        self.round_bf16(47, 47)
        A("v_rcp_f32 v45, v47")
        for reg in (28, 29):
            A(f"v_lshlrev_b32 v{reg}, 16, v{reg}")
            A(f"v_sub_f32 v{reg}, v{reg}, v44")
            self.round_bf16(reg, reg)
            A(f"v_mul_f32 v48, v{reg}, v45")
            A(f"v_fma_f32 v49, -v48, v47, v{reg}")
            A(f"v_fmac_f32 v48, v49, v45")
            A(f"v_cvt_pk_bf16_f32 v{reg}, v48, 0")
        XL = (28, 29); XH = (30, 31)
        A("v_lshlrev_b32 v30, 16, v28")
        A("v_lshlrev_b32 v31, 16, v29")
        A("v_lshlrev_b32 v10, 2, v6")
        A(f"ds_write_b32 v10, v28 offset:{L_XN}")
        A(f"ds_write_b32 v10, v29 offset:{L_XN + 256}")
        for e in range(8):
            A(f"v_mov_b32 v{ACC[e]}, 0")
        self.stamp(2)
        for i in range(32):
            A(f"s_waitcnt vmcnt({min(DQ - 1, 31 - i)})")
            if i + DQ < 32: wq_issue(i + DQ)
            s = W0 + 4 * i
            for e in range(4):
                A(f"v_dot2c_f32_bf16_dpp v{ACC[2*e]}, v{XL[i>>4]}, v{s+e} row_newbcast:{i&15} {DPPF}")
                A(f"v_dot2c_f32_bf16_dpp v{ACC[2*e+1]}, v{XH[i>>4]}, v{s+e} row_newbcast:{i&15} {DPPF}")
        A("v_lshlrev_b32 v11, 3, v3")
        A("v_lshl_add_u32 v11, v4, 5, v11")
        A(f"s_lshl_b32 s{T0}, s{SHW}, 9")
        A(f"v_add_u32 v10, s{T0}, v11")
        self.reduce8_rows(ACC)
        A(f"ds_write_b64 v10, v[{ACC[0]}:{ACC[1]}] offset:{L_QP}")
        A("s_waitcnt lgkmcnt(0)")
        self.stamp(3)
        A("s_barrier")
        if self.helper_exit:
            for k in range(4, 9): self.stamp(k)
            self.write_stamps(9)
            A("s_endpgm")
        A("s_load_dwordx8 s[52:59], s[0:1], 48")
        A("s_load_dwordx2 s[46:47], s[0:1], 32")
        A(f"s_add_u32 s{STAG}, s{STAG}, 1")
        A(f"s_and_b32 s{T0}, s{STAG}, 0xff")
        A(f"v_mov_b32 v12, s{T0}")
        A(f"s_movk_i32 s{SFF}, 0xff")
        A("v_lshrrev_b32 v9, 3, v2")
        A(f"s_lshl_b32 s{T0}, s{SB}, 9")
        A(f"s_lshl_b32 s{T1}, s{SCG}, 3")
        A(f"s_add_u32 s{T0}, s{T0}, s{T1}")
        A(f"v_add_u32 v9, s{T0}, v9")
        A("v_lshlrev_b32 v9, 1, v9")
        A(f"buffer_load_ushort v14, v9, s[{XS}:{XS+3}], 0 offen")
        A("s_waitcnt lgkmcnt(0)")
        self.srd(WOS, 46, 0x400000)
        self.srd(WGS, 52, 512 * 2752)
        self.srd(WUS, 54, 512 * 2752)
        self.srd(WDS, 56, 1376 * 1024)
        self.srd(OUTS, 58, 4096)
        lnf = self.newlab("noffn")
        A(f"s_cmp_eq_u32 s{SHW}, {self.ffn_wave}"); A(f"s_cbranch_scc0 {lnf}")
        A(f"s_cmp_ge_u32 s{SU}, 43"); A(f"s_cbranch_scc1 {lnf}")
        if self.do_ffn:
            if self.ffn4: self.ffn_unit4(XS, WGS, WUS, WDS, WSS, SU)
            else: self.ffn_unit(WGS, WUS, WDS, WSS, SU, SB)
        self.lab(lnf)
        A("v_lshlrev_b32 v8, 11, v3")
        A("v_lshl_add_u32 v8, v4, 4, v8")
        A(f"s_lshl_b32 s{T0}, s{SH}, 17")
        A(f"s_lshl_b32 s{T1}, s{SHW}, 8")
        A(f"s_add_u32 s{T0}, s{T0}, s{T1}")
        A(f"v_add_u32 v8, s{T0}, v8")
        A(f"s_mov_b32 s{T4}, 0")
        A(f"s_mov_b32 s{T0}, 0x05040100")
        A(f"s_mov_b32 s{T1}, 0x07060302")
        P = [[None] * 8 for _ in range(16)]
        spare = [W0 + 128]
        def wo_issue(n):
            k, half = n >> 1, n & 1
            r0 = W0 + 8 * k + 4 * half
            A(f"buffer_load_dwordx4 v[{r0}:{r0+3}], v8, s[{WOS}:{WOS+3}], s{T4} offen offset:{1024*half} {self.woflags}")
            if half == 1 and k < 15: A(f"s_add_u32 s{T4}, s{T4}, 0x2000")
        def wo_consume(n):
            k, half = n >> 1, n & 1
            if half == 0: return
            for j in range(4):
                a, b_ = W0 + 8 * k + j, W0 + 8 * k + 4 + j
                A(f"v_perm_b32 v{spare[0]}, v{b_}, v{a}, s{T0}")
                A(f"v_perm_b32 v{a}, v{b_}, v{a}, s{T1}")
                P[k][2 * j] = spare[0]
                P[k][2 * j + 1] = a
                spare[0] = b_
        if self.do_wo:
            self.paced(32, self.DO, wo_issue, wo_consume)
        else:
            for k in range(16):
                for e in range(8): P[k][e] = W0 + 8 * k + e
        self.stamp(4)
        ljoin = self.newlab("join")
        A(f"s_cmp_eq_u32 s{SHW}, 1"); A(f"s_cbranch_scc0 {ljoin}")
        if self.do_exch: self.exchange(WSS, SB, SCG)
        self.lab(ljoin)
        if self.ctl:
            lc = self.newlab("noctl")
            A(f"s_cmp_eq_u32 s{SHW}, {self.ctl_wave}"); A(f"s_cbranch_scc0 {lc}")
            self.controller(WSS, SB, STAG)
            self.lab(lc)
        if not self.do_tail:
            for k in range(5, 9): self.stamp(k)
            self.write_stamps(9)
            A("s_endpgm")
        self.stamp(5)
        A("s_waitcnt vmcnt(0) lgkmcnt(0)")
        A("s_barrier")
        self.stamp(6)
        A("v_mov_b32 v10, 0")
        A(f"ds_read_b128 v[24:27], v10 offset:{L_SC}")
        for w in range(4):
            A(f"ds_read_b64 v[{32+2*w}:{33+2*w}], v11 offset:{L_OP + 512*w}")
        for e in range(8):
            A(f"v_mov_b32 v{ACC[e]}, 0")
        A(f"s_lshl_b32 s{T0}, s2, 11")
        A(f"s_lshl_b32 s{T1}, s{SHW}, 9")
        A(f"s_add_u32 s{T0}, s{T0}, s{T1}")
        A("s_waitcnt lgkmcnt(0)")
        A("v_mul_f32 v28, v24, v32")
        A("v_mul_f32 v29, v24, v33")
        for w in range(1, 4):
            A(f"v_fmac_f32 v28, v{24+w}, v{32+2*w}")
            A(f"v_fmac_f32 v29, v{24+w}, v{33+2*w}")
        A("v_cvt_pk_bf16_f32 v28, v28, v29")
        A("s_nop 1")
        for k in range(16):
            for e in range(8):
                A(f"v_dot2c_f32_bf16_dpp v{ACC[e]}, v28, v{P[k][e]} row_newbcast:{k} {DPPF}")
        A("s_nop 2")
        self.reduce8_rows(ACC)
        self.tag(ACC[0]); self.tag(ACC[1])
        A(f"buffer_store_dwordx2 v[{ACC[0]}:{ACC[1]}], v11, s[{WSS}:{WSS+3}], s{T0} offen {self.pubflags}")
        self.stamp(7)
        lend = self.newlab("hend")
        A(f"s_cmp_eq_u32 s{SHW}, 0")
        A(f"s_cbranch_scc0 {lend}")
        if not self.do_final: A(f"s_branch {lend}")
        A("v_lshrrev_b32 v10, 3, v2")
        A("v_lshlrev_b32 v10, 2, v10")
        A(f"ds_read_b32 v24, v10 offset:{L_G}")
        A("v_lshlrev_b32 v10, 11, v2")
        A(f"s_lshl_b32 s{T0}, s{SB}, 17")
        A(f"s_lshl_b32 s{T1}, s{SCG}, 5")
        A(f"s_add_u32 s{T0}, s{T0}, s{T1}")
        if self.fpoll == 'simple':
            self.poll(32, 8, 10, WSS, T0, self.fsleep)
        else:
            self.poll_final(32, 10, WSS, T0)
        A("s_nop 1")
        self.reduce8_wave(list(range(32, 40)))
        A("s_waitcnt lgkmcnt(0)")
        self.round_bf16(32, 32)
        A("v_mul_f32 v32, v32, v24")
        self.round_bf16(32, 32)
        A("v_lshlrev_b32 v14, 16, v14")
        A("v_add_f32 v32, v14, v32")
        A("v_cvt_pk_bf16_f32 v32, v32, v32")
        A("v_and_b32 v10, 7, v2")
        A("v_cmp_eq_u32 vcc, 0, v10")
        A("s_nop 1")
        A(f"s_and_saveexec_b64 s[{T2}:{T3}], vcc")
        A(f"buffer_store_short v32, v9, s[{OUTS}:{OUTS+3}], 0 offen")
        A(f"s_mov_b64 exec, s[{T2}:{T3}]")
        A(f"s_and_b32 s{T0}, s2, 63")
        A(f"s_cmp_eq_u32 s{T0}, 0")
        A(f"s_cbranch_scc0 {lend}")
        A(f"v_mov_b32 v10, s{T5}")
        A(f"v_mov_b32 v13, s{STAG}")
        A("s_mov_b64 exec, 1")
        A(f"buffer_store_dword v13, v10, s[{WSS}:{WSS+3}], 0 offen")
        A("s_mov_b64 exec, -1")
        self.lab(lend)
        self.stamp(8)
        self.write_stamps(9, extra=range(52, 60) if self.ctl else ())
        A("s_endpgm")

    def controller(self, WSS, SB, STAG):
        A = self.A
        T0, T1, T2, T3, T4, T5 = self.T
        SM = 92
        A("v_mov_b32 v10, 0")
        A(f"ds_read_b32 v24, v10 offset:{L_MK}")
        A(f"s_and_b32 s{T2}, s{STAG}, 0xffff")
        A(f"s_lshl_b32 s93, s{T2}, 16")
        A("s_waitcnt lgkmcnt(0)")
        A(f"v_readfirstlane_b32 s{SM}, v24")
        A("v_lshlrev_b32 v25, 2, v2")
        NB = self.nbud
        A("v_and_b32 v31, 7, v2")
        A(f"s_lshr_b32 s{T0}, s2, 3")
        A(f"s_and_b32 s{T1}, s2, 7")
        A(f"s_sub_u32 s{T1}, s{T0}, s{T1}")
        A(f"v_add_u32 v32, s{T1}, v31")
        A("v_lshrrev_b32 v33, 3, v2")
        A("v_lshl_add_u32 v32, v33, 2, v32")
        A("v_and_b32 v32, 7, v32")
        A(f"s_and_b32 s{T0}, s{T0}, 24")
        A(f"v_or_b32 v32, s{T0}, v32")
        A("v_lshl_add_u32 v32, v32, 3, v31")
        A("v_lshlrev_b32 v32, 7, v32")
        def wait_prog(g):
            def test():
                A(f"ds_read_b32 v30, v10 offset:{L_PR}")
                A("s_waitcnt lgkmcnt(0)")
                A(f"v_readfirstlane_b32 s{T0}, v30")
                A("s_nop 3")
                A(f"s_cmp_ge_u32 s{T0}, {g}")
            self.lds_wait(test, sleep=self.csleep)
        for c, (gc, gr, gs, nmax) in enumerate(self.cps):
            wait_prog(gc)
            A("s_memrealtime s[94:95]")
            A(f"s_mov_b32 s{T1}, {WS_TT + 32768 * c}")
            A(f"s_lshl_b32 s{T3}, s2, 7")
            A(f"v_mov_b32 v26, s{T3}")
            A("s_waitcnt lgkmcnt(0)")
            A("s_and_b32 s94, s94, 0xffff")
            A("s_or_b32 s94, s94, s93")
            A("v_mov_b32 v27, s94")
            A("s_mov_b64 exec, 1")
            A(f"buffer_store_dword v27, v26, s[{WSS}:{WSS+3}], s{T1} offen {self.pubflags}")
            A("s_mov_b64 exec, -1")
            wait_prog(gr)
            A("v_mov_b32 v28, 0")
            A(f"s_mov_b64 exec, {(1 << NB) - 1}")
            A(f"buffer_load_dword v28, v32, s[{WSS}:{WSS+3}], s{T1} offen sc1")
            A("s_mov_b64 exec, -1")
            A("s_waitcnt vmcnt(0)")
            A("v_xor_b32 v29, s93, v28")
            A("v_lshrrev_b32 v29, 16, v29")
            A("v_cmp_eq_u32 vcc, 0, v29")
            A("v_sub_u32 v28, v28, v27")
            A("v_bfe_i32 v28, v28, 0, 16")
            A("v_add_u32 v29, 1500, v28")
            A(f"s_mov_b64 s[{T2}:{T3}], vcc")
            A("v_cmp_gt_u32 vcc, 3000, v29")
            A(f"s_and_b64 s[{T2}:{T3}], s[{T2}:{T3}], {(1 << NB) - 1}")
            A(f"s_and_b64 vcc, vcc, s[{T2}:{T3}]")
            A("v_cvt_f32_i32 v28, v28")
            A(f"s_bcnt1_i32_b64 s{T0}, vcc")
            A("v_cndmask_b32 v28, 0, v28, vcc")
            A(f"s_max_u32 s{T0}, s{T0}, 1")
            A(f"v_cvt_f32_u32 v29, s{T0}")
            self.allreduce("v_add_f32", 28, 30)
            A("v_rcp_f32 v29, v29")
            A("s_nop 0")
            A("v_mul_f32 v28, v28, v29")
            import struct
            f2h = lambda x: "0x%08x" % struct.unpack("<I", struct.pack("<f", x))[0]
            if self.ts:
                A("s_nop 0")
                A(f"v_readfirstlane_b32 s{52 + c}, v28")
                A(f"s_mov_b32 s{56 + c}, s{T0}")
            A(f"v_mul_f32 v28, {f2h(-1.0 / self.tau)}, v28")
            A(f"v_add_f32 v28, {f2h(0.5 - self.bias / self.tau)}, v28")
            A("v_max_f32 v28, 0, v28")
            A("v_cvt_u32_f32 v28, v28")
            A(f"v_min_u32 v28, {nmax}, v28")
            A("s_nop 0")
            A(f"v_readfirstlane_b32 s{T0}, v28")
            A("s_nop 3")
            A(f"s_bfm_b32 s{T0}, s{T0}, {gs}")
            A(f"s_or_b32 s{SM}, s{SM}, s{T0}")
            A(f"v_mov_b32 v28, s{SM}")
            A("s_mov_b64 exec, 15")
            A(f"ds_write_b32 v25, v28 offset:{L_MK}")
            A("s_mov_b64 exec, -1")

    def layernorm_row(self):
        A = self.A
        for j in range(4):
            A(f"v_lshlrev_b32 v{36+2*j}, 16, v{24+j}")
            A(f"v_and_b32 v{37+2*j}, 0xffff0000, v{24+j}")
        A("v_add_f32 v44, v36, v37")
        for j in range(2, 8):
            A(f"v_add_f32 v44, v44, v{36+j}")
        self.allreduce("v_add_f32", 44, 45)
        A("v_mul_f32 v44, 0x3b000000, v44")
        for j in range(8):
            A(f"v_sub_f32 v{36+j}, v{36+j}, v44")
        A("v_mul_f32 v46, v36, v36")
        for j in range(1, 8):
            A(f"v_fmac_f32 v46, v{36+j}, v{36+j}")
        self.allreduce("v_add_f32", 46, 45)
        A("v_mul_f32 v46, 0x3b000000, v46")
        self.round_bf16(44, 44)
        self.round_bf16(46, 46)
        A("v_add_f32 v46, 0x3727c5ac, v46")
        self.round_bf16(46, 46)
        A("v_sqrt_f32 v47, v46")
        A("s_nop 0")
        A("v_rcp_f32 v45, v47")
        A("v_fma_f32 v48, -v47, v47, v46")
        A("v_mul_f32 v45, 0.5, v45")
        A("v_fmac_f32 v47, v48, v45")
        self.round_bf16(47, 47)
        A("v_rcp_f32 v45, v47")

    def normalise(self, reg):
        A = self.A
        A(f"v_sub_f32 v{reg}, v{reg}, v44")
        self.round_bf16(reg, reg)
        A(f"v_mul_f32 v48, v{reg}, v45")
        A(f"v_fma_f32 v49, -v48, v47, v{reg}")
        A(f"v_fmac_f32 v48, v49, v45")
        A(f"v_cvt_pk_bf16_f32 v{reg}, v48, 0")

    def ffn_unit4(self, XS, WGS, WUS, WDS, WSS, SU):
        A = self.A
        T0, T1, T2, T3, T4, T5 = self.T
        G = [[64 + 8 * b + e for e in range(8)] for b in range(4)]
        U = [[96 + 8 * b + e for e in range(8)] for b in range(4)]
        LD = 200
        for b in range(4):
            A(f"s_load_dword s{52 + b}, s[50:51], {hex(WS_N + 128 * b)}")
        A("v_lshlrev_b32 v50, 4, v2")
        A("v_lshlrev_b32 v51, 5, v2")
        A(f"s_mov_b32 s{T3}, 4")
        lp = self.newlab("ln4")
        self.lab(lp)
        A(f"buffer_load_dwordx4 v[24:27], v50, s[{XS}:{XS+3}], 0 offen")
        A("s_waitcnt vmcnt(0)")
        self.layernorm_row()
        for j in range(4):
            A(f"v_lshlrev_b32 v{52+2*j}, 16, v{24+j}")
            A(f"v_and_b32 v{53+2*j}, 0xffff0000, v{24+j}")
        for j in range(8):
            self.normalise(52 + j)
        A(f"ds_write_b128 v51, v[52:55] offset:{L_X4}")
        A(f"ds_write_b128 v51, v[56:59] offset:{L_X4 + 16}")
        A("v_add_u32 v50, 0x400, v50")
        A("v_add_u32 v51, 0x800, v51")
        A(f"s_sub_u32 s{T3}, s{T3}, 1")
        A(f"s_cmp_lg_u32 s{T3}, 0")
        A(f"s_cbranch_scc1 {lp}")
        for b in range(4):
            for e in range(8):
                A(f"v_mov_b32 v{G[b][e]}, 0"); A(f"v_mov_b32 v{U[b][e]}, 0")
        A("v_lshrrev_b32 v60, 2, v2")
        A(f"s_movk_i32 s{T0}, 2752")
        A(f"v_mul_lo_u32 v61, v60, s{T0}")
        A("v_and_b32 v62, 3, v2")
        A("v_lshl_add_u32 v61, v62, 4, v61")
        A(f"s_lshl_b32 s{T1}, s{SU}, 6")
        A(f"v_add_u32 v61, s{T1}, v61")
        A("v_lshlrev_b32 v60, 2, v60")
        A(f"s_mov_b32 s{T4}, 0")
        A(f"s_mov_b32 s{T3}, 8")
        XL = [[16 + 4 * j + b for b in range(4)] for j in range(4)]
        XH = [[32 + 4 * j + b for b in range(4)] for j in range(4)]
        def f1_issue(j):
            A(f"buffer_load_dwordx4 v[{LD+8*j}:{LD+8*j+3}], v61, s[{WGS}:{WGS+3}], s{T4} offen {self.fflags}")
            A(f"buffer_load_dwordx4 v[{LD+8*j+4}:{LD+8*j+7}], v61, s[{WUS}:{WUS+3}], s{T4} offen {self.fflags}")
            A(f"s_add_u32 s{T4}, s{T4}, {16*2752}")
        def f1_consume(j):
            for b in range(4):
                for e in range(4):
                    A(f"v_dot2c_f32_bf16 v{G[b][2*e]}, v{XL[j][b]}, v{LD+8*j+e}")
                    A(f"v_dot2c_f32_bf16 v{G[b][2*e+1]}, v{XH[j][b]}, v{LD+8*j+e}")
                for e in range(4):
                    A(f"v_dot2c_f32_bf16 v{U[b][2*e]}, v{XL[j][b]}, v{LD+8*j+4+e}")
                    A(f"v_dot2c_f32_bf16 v{U[b][2*e+1]}, v{XH[j][b]}, v{LD+8*j+4+e}")
        def f1_pre():
            for j in range(4):
                for b in range(4):
                    A(f"ds_read_b32 v{XL[j][b]}, v60 offset:{L_X4 + 2048*b + 64*j}")
                if j == 1: A("s_waitcnt lgkmcnt(0)")
            A("v_add_u32 v60, 256, v60")
            A("s_waitcnt lgkmcnt(0)")
            for j in range(4):
                for b in range(4):
                    A(f"v_lshlrev_b32 v{XH[j][b]}, 16, v{XL[j][b]}")
        A("s_waitcnt lgkmcnt(0)")
        lp = self.newlab("f1")
        self.lab(lp)
        self.paced(4, self.DF1, f1_issue, f1_consume, per=2, pre=f1_pre)
        A(f"s_sub_u32 s{T3}, s{T3}, 1")
        A(f"s_cmp_lg_u32 s{T3}, 0")
        A(f"s_cbranch_scc1 {lp}")
        A("v_and_b32 v44, 3, v2")
        A("v_lshlrev_b32 v44, 3, v44")
        A("v_bfe_u32 v45, v2, 2, 2")
        A("v_add_u32 v44, v44, v45")
        A("v_bfe_u32 v45, v2, 4, 1")
        A("v_lshl_add_u32 v44, v45, 2, v44")
        A("v_lshlrev_b32 v44, 2, v44")
        for b in range(4):
            g, u = G[b], U[b]
            for e in range(8):
                A(f"v_permlane32_swap_b32 v{g[e]}, v{u[e]}")
            for e in range(8):
                A(f"v_add_f32 v{g[e]}, v{g[e]}, v{u[e]}")
            for e in range(4):
                A(f"v_permlane16_swap_b32 v{g[e]}, v{g[e+4]}")
            for e in range(4):
                A(f"v_add_f32 v{g[e]}, v{g[e]}, v{g[e+4]}")
            A("s_nop 0")
            for e in range(2):
                A(f"v_add_f32_dpp v{g[e]}, v{g[e]}, v{g[e]} row_ror:8 row_mask:0xf bank_mask:0x3")
                A(f"v_add_f32_dpp v{g[e]}, v{g[e+2]}, v{g[e+2]} row_ror:8 row_mask:0xf bank_mask:0xc")
            A("s_nop 1")
            A(f"v_add_f32_dpp v{g[0]}, v{g[0]}, v{g[0]} row_shl:4 row_mask:0xf bank_mask:0x5")
            A(f"v_add_f32_dpp v{g[0]}, v{g[1]}, v{g[1]} row_shr:4 row_mask:0xf bank_mask:0xa")
            A(f"v_mov_b32 v{u[0]}, v{g[0]}")
            A("s_nop 1")
            A(f"v_permlane32_swap_b32 v{g[0]}, v{u[0]}")
            self.round_bf16(g[0], g[0])
            self.round_bf16(u[0], u[0])
            x = g[0]
            A(f"v_mul_f32 v43, v{x}, v{x}")
            A(f"v_mul_f32 v43, v43, v{x}")
            A("v_mul_f32 v43, 0x3d372713, v43")
            A(f"v_add_f32 v43, v{x}, v43")
            A("v_mul_f32 v43, 0xc0135761, v43")
            A("v_exp_f32 v43, v43")
            A("s_nop 0")
            A("v_add_f32 v43, 1.0, v43")
            A("v_rcp_f32 v43, v43")
            A("s_nop 0")
            A(f"v_mul_f32 v43, v{x}, v43")
            self.round_bf16(43, 43)
            A(f"v_mul_f32 v43, v43, v{u[0]}")
            A("v_cvt_pk_bf16_f32 v43, v43, 0")
            A("s_mov_b32 exec_hi, 0")
            A(f"ds_write_b32 v44, v43 offset:{L_H4 + 128*b}")
            A("s_mov_b32 exec_hi, -1")
        A("v_lshlrev_b32 v44, 2, v4")
        HL = [[16 + 2 * b, 17 + 2 * b] for b in range(4)]
        HH = [[24 + 2 * b, 25 + 2 * b] for b in range(4)]
        for b in range(4):
            A(f"ds_read_b32 v{HL[b][0]}, v44 offset:{L_H4 + 128*b}")
            A(f"ds_read_b32 v{HL[b][1]}, v44 offset:{L_H4 + 128*b + 64}")
        Y = [[64 + 8 * b + e for e in range(8)] for b in range(4)]
        for b in range(4):
            for e in range(8):
                A(f"v_mov_b32 v{Y[b][e]}, 0")
        A("s_waitcnt lgkmcnt(0)")
        for b in range(4):
            for k in range(2):
                A(f"v_lshlrev_b32 v{HH[b][k]}, 16, v{HL[b][k]}")
        A("v_lshlrev_b32 v61, 4, v2")
        A(f"s_lshl_b32 s{T4}, s{SU}, 15")
        def f2_issue(i):
            j = i % 8
            A(f"buffer_load_dwordx4 v[{LD+4*j}:{LD+4*j+3}], v61, s[{WDS}:{WDS+3}], s{T4} offen {self.fflags}")
            A(f"s_add_u32 s{T4}, s{T4}, 0x400")
        def f2_consume(i):
            j = i % 8
            for b in range(4):
                for e in range(4):
                    A(f"v_dot2c_f32_bf16_dpp v{Y[b][2*e]}, v{HL[b][i>>4]}, v{LD+4*j+e} row_newbcast:{i&15} {DPPF}")
                    A(f"v_dot2c_f32_bf16_dpp v{Y[b][2*e+1]}, v{HH[b][i>>4]}, v{LD+4*j+e} row_newbcast:{i&15} {DPPF}")
        self.paced(32, self.DF2, f2_issue, f2_consume)
        A("s_nop 2")
        A("v_lshlrev_b32 v61, 5, v2")
        A(f"s_lshl_b32 s{T0}, s{SU}, 11")
        A(f"s_add_u32 s{T0}, s{T0}, {WS_Y2}")
        for b in range(4):
            A(f"s_add_u32 s{T1}, s{52 + b}, 1")
            A(f"s_and_b32 s{T1}, s{T1}, 0xff")
            A(f"v_mov_b32 v60, s{T1}")
            for e in range(8):
                A(f"v_bfi_b32 v{Y[b][e]}, s{self.SFF}, v60, v{Y[b][e]}")
            A(f"buffer_store_dwordx4 v[{Y[b][0]}:{Y[b][3]}], v61, s[{WSS}:{WSS+3}], s{T0} offen {self.pubflags}")
            A(f"buffer_store_dwordx4 v[{Y[b][4]}:{Y[b][7]}], v61, s[{WSS}:{WSS+3}], s{T0} offen offset:16 {self.pubflags}")
            if b < 3: A(f"s_add_u32 s{T0}, s{T0}, {43 * 2048}")

    def ffn_unit(self, WGS, WUS, WDS, WSS, SU, SB):
        A = self.A
        T0, T1, T2, T3, T4, T5 = self.T
        G = list(range(16, 24)); U = list(range(24, 32))
        LD = 200
        XV = 32
        for e in range(8):
            A(f"v_mov_b32 v{G[e]}, 0"); A(f"v_mov_b32 v{U[e]}, 0")
        A("v_lshrrev_b32 v40, 2, v2")
        A(f"s_movk_i32 s{T0}, 2752")
        A(f"v_mul_lo_u32 v41, v40, s{T0}")
        A("v_and_b32 v42, 3, v2")
        A("v_lshl_add_u32 v41, v42, 4, v41")
        A(f"s_lshl_b32 s{T1}, s{SU}, 6")
        A(f"v_add_u32 v41, s{T1}, v41")
        A("v_lshlrev_b32 v40, 2, v40")
        A(f"s_mov_b32 s{T4}, 0")
        A(f"s_mov_b32 s{T3}, 8")
        def f1_issue(j):
            A(f"buffer_load_dwordx4 v[{LD+8*j}:{LD+8*j+3}], v41, s[{WGS}:{WGS+3}], s{T4} offen {self.fflags}")
            A(f"buffer_load_dwordx4 v[{LD+8*j+4}:{LD+8*j+7}], v41, s[{WUS}:{WUS+3}], s{T4} offen {self.fflags}")
            A(f"s_add_u32 s{T4}, s{T4}, {16*2752}")
        def f1_consume(j):
            for e in range(4):
                A(f"v_dot2c_f32_bf16 v{G[2*e]}, v{XV+j}, v{LD+8*j+e}")
                A(f"v_dot2c_f32_bf16 v{G[2*e+1]}, v{XV+4+j}, v{LD+8*j+e}")
            for e in range(4):
                A(f"v_dot2c_f32_bf16 v{U[2*e]}, v{XV+j}, v{LD+8*j+4+e}")
                A(f"v_dot2c_f32_bf16 v{U[2*e+1]}, v{XV+4+j}, v{LD+8*j+4+e}")
        def f1_pre():
            for j in range(4):
                A(f"ds_read_b32 v{XV+j}, v40 offset:{L_XN + 64*j}")
            A("v_add_u32 v40, 256, v40")
            A("s_waitcnt lgkmcnt(0)")
            for j in range(4):
                A(f"v_lshlrev_b32 v{XV+4+j}, 16, v{XV+j}")
        lp = self.newlab("f1")
        self.lab(lp)
        self.paced(4, self.DF1, f1_issue, f1_consume, per=2, pre=f1_pre)
        A(f"s_sub_u32 s{T3}, s{T3}, 1")
        A(f"s_cmp_lg_u32 s{T3}, 0")
        A(f"s_cbranch_scc1 {lp}")
        A("s_nop 2")
        for e in range(8):
            A(f"v_permlane32_swap_b32 v{G[e]}, v{U[e]}")
        for e in range(8):
            A(f"v_add_f32 v{G[e]}, v{G[e]}, v{U[e]}")
        for e in range(4):
            A(f"v_permlane16_swap_b32 v{G[e]}, v{G[e+4]}")
        for e in range(4):
            A(f"v_add_f32 v{G[e]}, v{G[e]}, v{G[e+4]}")
        A("s_nop 0")
        for e in range(2):
            A(f"v_add_f32_dpp v{G[e]}, v{G[e]}, v{G[e]} row_ror:8 row_mask:0xf bank_mask:0x3")
            A(f"v_add_f32_dpp v{G[e]}, v{G[e+2]}, v{G[e+2]} row_ror:8 row_mask:0xf bank_mask:0xc")
        A("s_nop 1")
        A(f"v_add_f32_dpp v{G[0]}, v{G[0]}, v{G[0]} row_shl:4 row_mask:0xf bank_mask:0x5")
        A(f"v_add_f32_dpp v{G[0]}, v{G[1]}, v{G[1]} row_shr:4 row_mask:0xf bank_mask:0xa")
        A(f"v_mov_b32 v{U[0]}, v{G[0]}")
        A("s_nop 1")
        A(f"v_permlane32_swap_b32 v{G[0]}, v{U[0]}")
        self.round_bf16(G[0], G[0])
        self.round_bf16(U[0], U[0])
        x = G[0]
        A(f"v_mul_f32 v43, v{x}, v{x}")
        A(f"v_mul_f32 v43, v43, v{x}")
        A("v_mul_f32 v43, 0x3d372713, v43")
        A(f"v_add_f32 v43, v{x}, v43")
        A("v_mul_f32 v43, 0xc0135761, v43")
        A("v_exp_f32 v43, v43")
        A("s_nop 0")
        A("v_add_f32 v43, 1.0, v43")
        A("v_rcp_f32 v43, v43")
        A("s_nop 0")
        A(f"v_mul_f32 v43, v{x}, v43")
        self.round_bf16(43, 43)
        A(f"v_mul_f32 v43, v43, v{U[0]}")
        A("v_cvt_pk_bf16_f32 v43, v43, 0")
        A("v_and_b32 v44, 3, v2")
        A("v_lshlrev_b32 v44, 3, v44")
        A("v_bfe_u32 v45, v2, 2, 2")
        A("v_add_u32 v44, v44, v45")
        A("v_bfe_u32 v45, v2, 4, 1")
        A("v_lshl_add_u32 v44, v45, 2, v44")
        A("v_lshlrev_b32 v44, 2, v44")
        A("s_mov_b32 exec_hi, 0")
        A(f"ds_write_b32 v44, v43 offset:{L_HL}")
        A("s_mov_b32 exec_hi, -1")
        A("v_lshlrev_b32 v44, 2, v4")
        A(f"ds_read_b32 v32, v44 offset:{L_HL}")
        A(f"ds_read_b32 v33, v44 offset:{L_HL + 64}")
        for e in range(8):
            A(f"v_mov_b32 v{G[e]}, 0")
        A("s_waitcnt lgkmcnt(0)")
        A("v_lshlrev_b32 v34, 16, v32")
        A("v_lshlrev_b32 v35, 16, v33")
        A("v_lshlrev_b32 v41, 4, v2")
        A(f"s_lshl_b32 s{T4}, s{SU}, 15")
        def f2_issue(i):
            j = i % 8
            A(f"buffer_load_dwordx4 v[{LD+4*j}:{LD+4*j+3}], v41, s[{WDS}:{WDS+3}], s{T4} offen {self.fflags}")
            A(f"s_add_u32 s{T4}, s{T4}, 0x400")
        def f2_consume(i):
            j = i % 8
            for e in range(4):
                A(f"v_dot2c_f32_bf16_dpp v{G[2*e]}, v{32 + (i>>4)}, v{LD+4*j+e} row_newbcast:{i&15} {DPPF}")
                A(f"v_dot2c_f32_bf16_dpp v{G[2*e+1]}, v{34 + (i>>4)}, v{LD+4*j+e} row_newbcast:{i&15} {DPPF}")
        assert self.DF2 <= 7
        self.paced(32, self.DF2, f2_issue, f2_consume)
        A("s_nop 2")
        for e in range(8):
            self.tag(G[e])
        A(f"s_mul_i32 s{T0}, s{SB}, 43")
        A(f"s_add_u32 s{T0}, s{T0}, s{SU}")
        A(f"s_lshl_b32 s{T0}, s{T0}, 11")
        A(f"s_add_u32 s{T0}, s{T0}, {WS_Y2}")
        A("v_lshlrev_b32 v41, 5, v2")
        A(f"buffer_store_dwordx4 v[{G[0]}:{G[3]}], v41, s[{WSS}:{WSS+3}], s{T0} offen {self.pubflags}")
        A(f"buffer_store_dwordx4 v[{G[4]}:{G[7]}], v41, s[{WSS}:{WSS+3}], s{T0} offen offset:16 {self.pubflags}")

    def exchange(self, WSS, SB, SCG):
        A = self.A
        T0, T1, T2, T3, T4, T5 = self.T
        A("v_mov_b32 v10, 0")
        def test_flags():
            A(f"ds_read_b128 v[24:27], v10 offset:{L_FL}")
            A("s_waitcnt lgkmcnt(0)")
            A("v_bitop3_b32 v24, v24, v25, v26 bitop3:0x80")
            A("v_and_b32 v24, v24, v27")
            A("s_nop 0")
            A(f"v_readfirstlane_b32 s{T0}, v24")
            A("s_nop 3")
            A(f"s_cmp_eq_u32 s{T0}, 1")
        self.lds_wait(test_flags)
        A("v_and_b32 v13, 3, v2")
        A("v_lshlrev_b32 v13, 3, v13")
        A(f"ds_read_b64 v[24:25], v13 offset:{L_ML}")
        A("s_waitcnt lgkmcnt(0)")
        A(f"s_mov_b32 s{T1}, 0x3fb8aa3b")
        A(f"v_max_f32_dpp v26, v24, v24 quad_perm:[2,3,0,1] {DPPF}")
        A("s_nop 1")
        A(f"v_max_f32_dpp v26, v26, v26 quad_perm:[1,0,3,2] {DPPF}")
        A("v_sub_f32 v27, v24, v26")
        A(f"v_mul_f32 v27, s{T1}, v27")
        A("v_exp_f32 v27, v27")
        A("s_nop 0")
        A("v_mul_f32 v27, v27, v25")
        A("s_nop 1")
        A(f"v_add_f32_dpp v27, v27, v27 quad_perm:[2,3,0,1] {DPPF}")
        A("s_nop 1")
        A(f"v_add_f32_dpp v27, v27, v27 quad_perm:[1,0,3,2] {DPPF}")
        A("v_mov_b32 v28, v26")
        A("v_mov_b32 v29, v27")
        self.tag(28); self.tag(29)
        A("v_mov_b32 v30, v28")
        A("v_mov_b32 v31, v29")
        A("v_and_b32 v26, 0xffffff00, v26")
        A("v_and_b32 v27, 0xffffff00, v27")
        A(f"s_lshl_b32 s{T2}, s2, 7")
        A(f"s_add_u32 s{T2}, s{T2}, {WS_ML}")
        A("s_mov_b64 exec, 1")
        A(f"buffer_store_dwordx4 v[28:31], v10, s[{WSS}:{WSS+3}], s{T2} offen {self.pubflags}")
        A(f"buffer_store_dwordx4 v[28:31], v10, s[{WSS}:{WSS+3}], s{T2} offen offset:16 {self.pubflags}")
        A("s_mov_b64 exec, -1")
        def test_prog():
            A(f"ds_read_b32 v30, v10 offset:{L_PR}")
            A("s_waitcnt lgkmcnt(0)")
            A(f"v_readfirstlane_b32 s{T0}, v30")
            A("s_nop 3")
            A(f"s_cmp_ge_u32 s{T0}, {16 + self.LG}")
        self.lds_wait(test_prog, sleep=16)
        A("v_lshlrev_b32 v10, 11, v2")
        A(f"s_mul_i32 s{T2}, s{SB}, {43*2048}")
        A(f"s_lshl_b32 s{T3}, s{SCG}, 5")
        A(f"s_add_u32 s{T2}, s{T2}, s{T3}")
        A(f"s_add_u32 s{T2}, s{T2}, {WS_Y2}")
        for e in range(8):
            A(f"v_mov_b32 v{32+e}, 0")
        A("s_mov_b32 exec_hi, 0x7ff")
        self.poll(32, 8, 10, WSS, T2, 16, code=2)
        A("s_nop 1")
        self.reduce8_wave(list(range(32, 40)))
        self.round_bf16(32, 32)
        A("v_mul_f32 v33, 0xbfb8aa3b, v32")
        A("v_exp_f32 v33, v33")
        A("s_nop 0")
        A("v_add_f32 v33, 1.0, v33")
        A("v_rcp_f32 v34, v33")
        A("s_nop 0")
        A("v_mul_f32 v35, v32, v34")
        self.round_bf16(35, 35)
        A("v_lshrrev_b32 v13, 3, v2")
        A("v_lshlrev_b32 v13, 2, v13")
        A(f"ds_write_b32 v13, v35 offset:{L_G}")
        A(f"s_xor_b32 s{T2}, s2, 32")
        A(f"s_lshl_b32 s{T2}, s{T2}, 7")
        A(f"s_add_u32 s{T2}, s{T2}, {WS_ML}")
        A("v_mov_b32 v10, 0")
        self.poll(44, 8, 10, WSS, T2, 16, code=3)
        A("v_mov_b32 v28, v44")
        A("v_mov_b32 v29, v45")
        A("v_max_f32 v30, v26, v28")
        A("v_sub_f32 v31, v26, v30"); A(f"v_mul_f32 v31, s{T1}, v31"); A("v_exp_f32 v31, v31")
        A("v_sub_f32 v40, v28, v30"); A(f"v_mul_f32 v40, s{T1}, v40"); A("v_exp_f32 v40, v40")
        A("v_sub_f32 v41, v24, v30"); A(f"v_mul_f32 v41, s{T1}, v41"); A("v_exp_f32 v41, v41")
        A("v_mul_f32 v31, v31, v27")
        A("v_fmac_f32 v31, v40, v29")
        A("v_rcp_f32 v40, v31")
        A("s_nop 0")
        A("v_mul_f32 v42, v41, v40")
        A("v_fma_f32 v43, -v42, v31, v41")
        A("v_fmac_f32 v42, v43, v40")
        A("v_and_b32 v13, 3, v2")
        A("v_lshlrev_b32 v13, 2, v13")
        A(f"ds_write_b32 v13, v42 offset:{L_SC}")

    def generate(self):
        A = self.A
        self.L.append(HEADER + f"; @launch grid=(256,1,1) block=(512,1,1) lds={self.lds_bytes}")
        self.L.append('.amdgcn_target "amdgcn-amd-amdhsa--gfx950"')
        self.L.append(".text")
        self.L.append(f".globl {KNAME}")
        self.L.append(".p2align 8")
        self.L.append(f".type {KNAME},@function")
        self.lab(KNAME)
        A("s_cmp_ge_u32 s2, 0x100")
        A("s_cbranch_scc1 L_exit")
        A("s_load_dwordx4 s[8:11], s[0:1], 8")
        A("v_lshrrev_b32 v1, 6, v0")
        A("v_and_b32 v2, 63, v0")
        self.stamp(0)
        A("v_readfirstlane_b32 s3, v1")
        A("s_nop 1")
        A("s_cmp_ge_u32 s3, 4")
        A("s_cbranch_scc1 L_helper")
        self.streamer()
        self.helper()
        self.lab("L_exit")
        A("s_endpgm")
        self.lab("L_code_end")
        body = [ln for ln in self.L if ln.startswith("  ") and not ln.strip().startswith(";")]
        kb = (len(body) * 8 + 1023) // 1024 + 1
        out = []
        for ln in self.L:
            if "PREFETCH_PLACEHOLDER" in ln:
                for i in range((kb + 31) // 32):
                    out.append(f"  v_min_u32 v13, L_code_end-{KNAME}-16, v10")
                    out.append("  global_load_dwordx4 v[196:199], v13, s[90:91]")
                    out.append("  v_add_u32 v10, 0x8000, v10")
            else:
                out.append(ln)
        self.L = out
        self.L.append('.section .rodata,"a"')
        self.L.append(".p2align 6")
        self.L.append(f".amdhsa_kernel {KNAME}")
        self.L.append("  .amdhsa_next_free_vgpr 240")
        self.L.append("  .amdhsa_next_free_sgpr 96")
        self.L.append("  .amdhsa_accum_offset 240")
        self.L.append("  .amdhsa_group_segment_fixed_size 0")
        self.L.append("  .amdhsa_kernarg_size 96")
        self.L.append("  .amdhsa_user_sgpr_count 2")
        self.L.append("  .amdhsa_user_sgpr_kernarg_segment_ptr 1")
        self.L.append("  .amdhsa_system_sgpr_workgroup_id_x 1")
        self.L.append("  .amdhsa_float_denorm_mode_32 3")
        self.L.append(".end_amdhsa_kernel")
        return "\n".join(self.L) + "\n"


if __name__ == "__main__":
    os.makedirs("out", exist_ok=True)
    names = []
    def add(name, **kw):
        txt = Gen(**kw).generate()
        build(txt, "out/" + name, KNAME)
        names.append("out/" + name)
    if len(sys.argv) > 1:
        exec(open(sys.argv[1]).read())
    else:
        add("v2")
    open("out/mlist.txt", "w").write("\n".join(names) + "\n")
    print(names)
```

```python
import sys, json
from gen5 import Gen
kw = json.loads(sys.argv[2]) if len(sys.argv) > 2 else {}
for k in ("fs",):
    if k in kw: kw[k] = tuple(kw[k])
if "cps" in kw: kw["cps"] = tuple(tuple(x) for x in kw["cps"])
txt = Gen(**kw).generate()
open(sys.argv[1], "w").write(txt)
print("written", sys.argv[1], len(txt))
```

```python
import sys, os
from common import build

KNAME = "recurrent_scan__mha_block_cached__geglu_ffn__decode_kernel"

HEADER = """; Kernarg layout for this problem (96 bytes, ptrs only, base s[0:1]):
;   offset  88: d_ws      1073741824 bytes workspace
;
; final combine.  Values handed between workgroups through d_ws carry an 8-bit tag in their low mantissa bits; the
; tag is one more than a per-batch word found in d_ws on entry (it only tells this launch's hand-offs from older
"""

WS_Y   = 0x00000
WS_ML  = 0x80000
WS_Y2  = 0x90000
WS_N   = 0xF0000
WS_DSEL = 0xF8000
WS_TT  = 0x100000
WS_SZ  = 0x140000
WS_TS  = 0x200000
L_SP  = 0x0000
L_QP  = 0x4000
L_OP  = 0x4800
L_XN  = 0x5000
L_ML  = 0x5800
L_FL  = 0x5820
L_PR  = 0x5830
L_SC  = 0x5840
L_G   = 0x5860
L_HL  = 0x5880
L_MK  = 0x5900
L_TS3 = 0x5C00
L_X4  = 0x6000
L_H4  = 0x5A00
L_KB  = 0x8000
DPPF = "row_mask:0xf bank_mask:0xf"


class Gen:
    def __init__(self, D=5, DF=5, B=48, BL=0, BT=16, DQ=3, DO=2, DF1=1, DF2=2, LG=12, ffn_wave=3,
                 kvflags="nt", wflags="nt", woflags="nt", fflags="nt", pubflags="sc1",
                 ts=False, prefetch_code=True, prio=True, spin_limit=1 << 16, fsleep=1,
                 do_ffn=True, do_wo=True, do_exch=True, do_tail=True, do_final=True, helper_exit=False,
                 skip_wq=False, DH=None, DL=None, mask=0, mask2=0, mask_src='const', tlbwarm=0, ts2=False, ctl=False, cps=((10,11,12,3),(14,17,18,4),(21,22,23,4),(26,27,28,3)), tau=40, bias=0, ctl_wave=2, csleep=8, nbud=8, ffn4=True, fpoll='simple', fs=(24, 32, 8, 8), nsets=2, stag=4, mark=False, ncp_early=0, ts3=False, ytr=False, mstep=None, fastentry=True, outflags=''):
        self.__dict__.update(locals())
        del self.__dict__["self"]
        self.L = []
        self.uid = 0
        self.lds_bytes = L_KB + 4 * BL * 1024

    def A(self, s):
        self.L.append("  " + s)
    def lab(self, s):
        self.L.append(s + ":")
    def newlab(self, base):
        self.uid += 1
        return f"L_{base}_{self.uid}"

    def stamp(self, k):
        if self.ts:
            self.A(f"s_memrealtime s[{64+2*k}:{65+2*k}]")

    def write_stamps(self, n, extra=()):
        if not self.ts:
            return
        A = self.A
        A("s_load_dwordx2 s[40:41], s[0:1], 88")
        A("s_waitcnt lgkmcnt(0)")
        A(f"s_add_u32 s40, s40, {WS_TS}")
        A("s_addc_u32 s41, s41, 0")
        A("s_mov_b32 s42, 0x100000")
        A("s_mov_b32 s43, 0x20000")
        A("s_lshl_b32 s44, s2, 3")
        A("s_add_u32 s44, s44, s3")
        A("s_lshl_b32 s44, s44, 7")
        A("s_mov_b64 exec, 1")
        A("v_mov_b32 v1, 0")
        for k in range(n):
            A(f"v_mov_b32 v0, s{64+2*k}")
            A(f"buffer_store_dword v0, v1, s[40:43], s44 offen offset:{4*k}")
            A("s_nop 1")
        for k, r in enumerate(extra):
            A(f"v_mov_b32 v0, s{r}")
            A(f"buffer_store_dword v0, v1, s[40:43], s44 offen offset:{4*(16+k)}")
            A("s_nop 1")
        A("s_waitcnt vmcnt(0)")
        A("s_mov_b64 exec, -1")

    def srd(self, dst, src, size):
        A = self.A
        A(f"s_mov_b32 s{dst}, s{src}")
        A(f"s_mov_b32 s{dst+1}, s{src+1}")
        A(f"s_mov_b32 s{dst+2}, {size}")
        A(f"s_mov_b32 s{dst+3}, 0x20000")

    def paced(self, n, d, issue, consume, per=1, pre=None):
        d = min(d, n)
        for j in range(d):
            issue(j)
        if pre: pre()
        for j in range(d, n + d):
            k = j - d
            left = min(d - 1, n - 1 - k)
            self.A(f"s_waitcnt vmcnt({left * per})")
            if j < n: issue(j)
            consume(k)

    def reduce8_rows(self, a):
        A = self.A
        for e in range(4):
            A(f"v_permlane32_swap_b32 v{a[e]}, v{a[e+4]}")
        for e in range(4):
            A(f"v_add_f32 v{a[e]}, v{a[e]}, v{a[e+4]}")
        A("s_nop 0")
        A(f"v_permlane16_swap_b32 v{a[0]}, v{a[2]}")
        A(f"v_permlane16_swap_b32 v{a[1]}, v{a[3]}")
        A(f"v_add_f32 v{a[0]}, v{a[0]}, v{a[2]}")
        A(f"v_add_f32 v{a[1]}, v{a[1]}, v{a[3]}")

    def reduce8_wave(self, a):
        A = self.A
        self.reduce8_rows(a)
        A("s_nop 1")
        A(f"v_add_f32_dpp v{a[0]}, v{a[0]}, v{a[0]} row_ror:8 row_mask:0xf bank_mask:0x3")
        A(f"v_add_f32_dpp v{a[0]}, v{a[1]}, v{a[1]} row_ror:8 row_mask:0xf bank_mask:0xc")
        A("s_nop 1")
        A(f"v_add_f32_dpp v{a[0]}, v{a[0]}, v{a[0]} row_half_mirror {DPPF}")
        A("s_nop 1")
        A(f"v_add_f32_dpp v{a[0]}, v{a[0]}, v{a[0]} quad_perm:[2,3,0,1] {DPPF}")
        A("s_nop 1")
        A(f"v_add_f32_dpp v{a[0]}, v{a[0]}, v{a[0]} quad_perm:[1,0,3,2] {DPPF}")

    def allreduce(self, op, x, t):
        A = self.A
        for m in ("row_ror:8", "row_ror:4", "row_ror:2", "row_ror:1"):
            A("s_nop 1")
            A(f"{op}_dpp v{x}, v{x}, v{x} {m} {DPPF}")
        A(f"v_mov_b32 v{t}, v{x}")
        A("s_nop 1")
        A(f"v_permlane16_swap_b32 v{x}, v{t}")
        A(f"{op} v{x}, v{x}, v{t}")
        A(f"v_mov_b32 v{t}, v{x}")
        A("s_nop 1")
        A(f"v_permlane32_swap_b32 v{x}, v{t}")
        A(f"{op} v{x}, v{x}, v{t}")

    def round_bf16(self, dst, src):
        self.A(f"v_cvt_pk_bf16_f32 v{dst}, v{src}, v{src}")
        self.A(f"v_and_b32 v{dst}, 0xffff0000, v{dst}")

    def streamer(self):
        A, D, B, BL = self.A, self.D, self.B, self.BL
        VOFF, VLDS, VM, VL, VT = 3, 4, 5, 6, 7
        Q = [8, 9, 10, 11]
        T = list(range(12, 28))
        ACC = list(range(28, 36))
        PL, PH, PLN = 36, 37, 38
        VPRA, VPRV, VKB = 44, 45, 46
        R0, E0 = 48, 112
        assert 16 <= B <= 48 and B % 16 == 0 and BL in (0, 16, 32)
        KS, VS = 12, 16
        SBASE, SOFF, SCNT = 20, 21, 22
        M1, M2, SSC, SLG = 24, 26, 28, 29
        NF = B + BL

        self.lab("L_stream")
        A("s_and_b32 s23, s2, 7")
        A("s_bfe_u32 s30, s2, 0x20003")
        A("s_lshl_b32 s30, s30, 3")
        A("s_add_u32 s23, s23, s30")
        A("s_lshr_b32 s30, s2, 6")
        A("s_lshl_b32 s30, s30, 5")
        A("s_add_u32 s23, s23, s30")
        A("s_lshl_b32 s23, s23, 1")
        A("s_bfe_u32 s30, s2, 0x10005")
        A("s_add_u32 s23, s23, s30")
        A(f"s_lshl_b32 s{SBASE}, s23, 20")
        A("s_lshl_b32 s30, s3, 10")
        A(f"v_lshlrev_b32 v{VOFF}, 4, v2")
        A(f"v_add_u32 v{VOFF}, s30, v{VOFF}")
        A(f"s_mov_b32 s{SOFF}, s{SBASE}")
        if BL:
            A(f"s_mul_i32 s31, s3, {BL*1024}")
            A(f"s_add_u32 s31, s31, {L_KB}")
        if self.fastentry:
            A(f"s_mov_b32 s{KS+2}, 0x10000000"); A(f"s_mov_b32 s{KS+3}, 0x20000")
        A("s_waitcnt lgkmcnt(0)")
        if self.ts2: A("s_memrealtime s[80:81]")
        if not self.fastentry: self.srd(KS, 8, 0x10000000)

        issued, consumed = [], set()
        state = {"next": 0, "done": -1}
        def is_lds(n): return B <= n < NF
        def slot(n):
            if n < 16: return R0 + 4 * n
            if n < B: return E0 + 4 * (n - 16)
            return R0 + 4 * (n % 16)
        def slot_free(n):
            if is_lds(n): return True
            s = slot(n)
            return not any(m < n and not is_lds(m) and slot(m) == s and m not in consumed for m in issued)
        def issue(n):
            assert n == state["next"]
            if n == 256:
                A(f"s_mov_b32 s{SOFF}, s{SBASE}")
            srd = KS if n < 256 else VS
            if is_lds(n):
                A(f"s_add_u32 m0, s31, {(n - B) * 1024}")
                A("s_nop 0")
                A(f"buffer_load_dwordx4 v{VOFF}, s[{srd}:{srd+3}], s{SOFF} offen {self.kvflags} lds")
            else:
                s = slot(n)
                A(f"buffer_load_dwordx4 v[{s}:{s+3}], v{VOFF}, s[{srd}:{srd+3}], s{SOFF} offen {self.kvflags}")
            A(f"s_add_u32 s{SOFF}, s{SOFF}, 0x1000")
            issued.append(n); state["next"] = n + 1
        def wait_for(n):
            if n <= state["done"]:
                return
            cnt = len(issued) - 1 - issued.index(n)
            assert cnt <= 63
            A(f"s_waitcnt vmcnt({cnt})")
            state["done"] = n
        def issue_upto(lim):
            while state["next"] <= lim and state["next"] < 512 and slot_free(state["next"]):
                issue(state["next"])

        for j in range(NF):
            if j >= self.DF:
                wait_for(j - self.DF)
            issue(j)
            if self.ts2 and j == self.DF - 1: A("s_memrealtime s[82:83]")
            if self.ts2 and j == self.DF: A("s_memrealtime s[84:85]")
            j0 = self.DF - 1 if self.fastentry else 0
            if j == j0:
                if self.fastentry:
                    A(f"s_mov_b32 s{VS+2}, 0x10000000"); A(f"s_mov_b32 s{VS+3}, 0x20000")
                else:
                    self.srd(VS, 10, 0x10000000)
            if j == (j0 if self.fastentry else 1):
                A(f"s_mov_b32 s{M1}, 0xaaaaaaaa"); A(f"s_mov_b32 s{M1+1}, 0xaaaaaaaa")
                A(f"s_mov_b32 s{M2}, 0xcccccccc"); A(f"s_mov_b32 s{M2+1}, 0xcccccccc")
                A(f"s_mov_b32 s{SSC}, 0x3db504f3"); A(f"s_mov_b32 s{SLG}, 0x3fb8aa3b")
            if j == (j0 if self.fastentry else 2):
                A("s_lshl_b32 s30, s3, 12")
                A(f"v_lshlrev_b32 v{VLDS}, 2, v2")
                A(f"v_add_u32 v{VLDS}, s30, v{VLDS}")
                A(f"v_mov_b32 v{VM}, 0xff800000")
                A("v_and_b32 v1, 15, v2")
                A("v_lshlrev_b32 v1, 5, v1")
                A("s_lshl_b32 s30, s3, 2")
                A(f"v_mov_b32 v{VPRA}, s30")
                if BL:
                    A(f"v_lshlrev_b32 v{VKB}, 4, v2")
                    A(f"v_add_u32 v{VKB}, s31, v{VKB}")
                if self.prio: A("s_setprio 2")
        if self.DH is not None and not self.ctl:
            if self.mask_src == 'ws':
                A("s_load_dwordx2 s[34:35], s[0:1], 88")
                A("s_waitcnt lgkmcnt(0)")
                A("s_lshl_b32 s32, s2, 2")
                A(f"s_add_u32 s32, s32, {WS_DSEL}")
                A("s_load_dword s33, s[34:35], s32")
                A("s_waitcnt lgkmcnt(0)")
            elif self.mask_src == 'ffn':
                A("s_bfe_u32 s32, s2, 0x30003")
                A("s_and_b32 s33, s2, 7")
                A("s_mul_i32 s33, s33, 6")
                A("s_add_u32 s33, s33, s32")
                A("s_cmp_ge_u32 s32, 6")
                A("s_cselect_b32 s33, 63, s33")
                if self.ffn4:
                    A("s_and_b32 s32, s32, 3")
                    A("s_lshr_b32 s35, s2, 6")
                    A("s_cmp_lg_u32 s32, s35")
                    A("s_cselect_b32 s33, 63, s33")
                A("s_cmp_lt_u32 s33, 43")
                A(f"s_cselect_b32 s33, {self.mask}, {self.mask2}")
            else:
                A(f"s_mov_b32 s33, {self.mask}")
        self.stamp(1)
        A("s_barrier")
        self.stamp(2)
        for hw in range(4):
            A(f"ds_read_b128 v[{12+8*hw}:{15+8*hw}], v1 offset:{L_QP + hw*512}")
            A(f"ds_read_b128 v[{16+8*hw}:{19+8*hw}], v1 offset:{L_QP + hw*512 + 16}")
        A("s_waitcnt lgkmcnt(4)")
        for e in range(8):
            A(f"v_add_f32 v{12+e}, v{12+e}, v{20+e}")
        A("s_waitcnt lgkmcnt(0)")
        for e in range(8):
            A(f"v_add_f32 v{28+e}, v{28+e}, v{36+e}")
        for e in range(8):
            A(f"v_add_f32 v{12+e}, v{12+e}, v{28+e}")
        for e in range(4):
            A(f"v_cvt_pk_bf16_f32 v{Q[e]}, v{12+2*e}, v{13+2*e}")

        DH = self.DH
        SMASK = 33
        sw = DH is not None
        kk = (DH - D) if sw else 0

        def k_dots(i, s):
            A(f"v_dot2_f32_bf16 v{T[i]}, v{s}, v{Q[0]}, 0")
            for e in range(1, 4):
                A(f"v_dot2_f32_bf16 v{T[i]}, v{s+e}, v{Q[e]}, v{T[i]}")
        def v_dots(i, s):
            for e in range(4):
                A(f"v_dot2c_f32_bf16_dpp v{ACC[2*e]}, v{PL}, v{s+e} row_newbcast:{i} {DPPF}")
                A(f"v_dot2c_f32_bf16_dpp v{ACC[2*e+1]}, v{PH}, v{s+e} row_newbcast:{i} {DPPF}")
        def k_end():
            A("s_nop 0")
            A(f"v_add_f32_dpp v{T[7]}, v{T[7]}, v{T[7]} row_ror:8 row_mask:0xf bank_mask:0x3")
            A(f"v_add_f32_dpp v{T[7]}, v{T[15]}, v{T[15]} row_ror:8 row_mask:0xf bank_mask:0xc")
            for k in range(4):
                A(f"v_add_f32_dpp v{T[k]}, v{T[k]}, v{T[k]} row_half_mirror row_mask:0xf bank_mask:0x5")
                A(f"v_add_f32_dpp v{T[k]}, v{T[k+4]}, v{T[k+4]} row_half_mirror row_mask:0xf bank_mask:0xa")
            A("s_nop 0")
            for k in range(4):
                A(f"v_add_f32_dpp v{T[k]}, v{T[k]}, v{T[k]} quad_perm:[2,3,0,1] {DPPF}")
            A(f"v_cndmask_b32_e64 v{T[0]}, v{T[0]}, v{T[2]}, s[{M2}:{M2+1}]")
            A(f"v_cndmask_b32_e64 v{T[1]}, v{T[1]}, v{T[3]}, s[{M2}:{M2+1}]")
            A("s_nop 0")
            A(f"v_add_f32_dpp v{T[0]}, v{T[0]}, v{T[0]} quad_perm:[1,0,3,2] {DPPF}")
            A(f"v_add_f32_dpp v{T[1]}, v{T[1]}, v{T[1]} quad_perm:[1,0,3,2] {DPPF}")
            A(f"v_cndmask_b32_e64 v{T[0]}, v{T[0]}, v{T[1]}, s[{M1}:{M1+1}]")
            self.round_bf16(T[0], T[0])
            A(f"v_mul_f32 v{T[0]}, s{SSC}, v{T[0]}")
            self.round_bf16(T[0], T[0])
            A(f"v_max_f32 v{VM}, v{VM}, v{T[0]}")
            A(f"ds_write_b32 v{VLDS}, v{T[0]} offset:{L_SP}")
            A(f"v_add_u32 v{VLDS}, 0x100, v{VLDS}")
        def k_extra(i):
            if i >= 9:
                k = i - 9
                A(f"v_add_f32_dpp v{T[k]}, v{T[k]}, v{T[k]} row_ror:8 row_mask:0xf bank_mask:0x3")
                A(f"v_add_f32_dpp v{T[k]}, v{T[k+8]}, v{T[k+8]} row_ror:8 row_mask:0xf bank_mask:0xc")
        VMK = 47
        ctl = self.ctl
        def v_pre(last):
            if not last:
                A(f"v_add_u32 v{VLDS}, 0x100, v{VLDS}")
                A(f"ds_read_b32 v{PLN}, v{VLDS} offset:{L_SP}")
        def mask_read():
            if ctl: A(f"ds_read_b32 v{VMK}, v{VPRA} offset:{L_MK}")
        def head(kind):
            A(f"s_sub_u32 s34, {15 + (16 if kind == 'v' else 0)}, s{SCNT}")
            if self.ts3:
                A("s_memrealtime s[36:37]")
                A("s_lshl_b32 s35, s34, 2")
                A(f"v_lshlrev_b32 v39, 5, v{VPRA}")
                A("v_add_u32 v39, s35, v39")
                A("s_waitcnt lgkmcnt(0)")
                A("v_mov_b32 v40, s36")
                A(f"ds_write_b32 v39, v40 offset:{L_TS3}")
            if ctl:
                if kind == "k": A("s_waitcnt lgkmcnt(1)")
                A(f"v_readfirstlane_b32 s{SMASK}, v{VMK}")
            if kind == "v": v_pre(False)
            if self.mstep is None: mask_read()
            if kind == "v" or ctl:
                A(f"v_mov_b32 v{VPRV}, s34")
                A(f"ds_write_b32 v{VPRA}, v{VPRV} offset:{L_PR}")
        def v_end(last):
            if not last:
                A("s_waitcnt lgkmcnt(0)")
                A(f"v_mov_b32 v{PL}, v{PLN}")
                A(f"v_lshlrev_b32 v{PH}, 16, v{PLN}")

        def steps(kind, g, d, first=0, labels=None, in_loop=False):
            base = 16 * g + (256 if kind == "v" else 0)
            lds_group = kind == "k" and is_lds(base)
            if lds_group:
                wait_for(base + 15)
                for i in range(16):
                    s = E0 + 4 * i
                    A(f"ds_read_b128 v[{s}:{s+3}], v{VKB} offset:{(base - B + i) * 1024}")
            for i in range(first, 16):
                n = base + i
                if labels and i in labels: self.lab(labels[i])
                if not lds_group: wait_for(n)
                lim = n + d
                if n < NF: lim = max(lim, NF + d - 1)
                issue_upto(lim)
                if lds_group:
                    A(f"s_waitcnt lgkmcnt({15 - i})")
                    s = E0 + 4 * i
                else:
                    s = slot(n)
                if in_loop and self.mstep is not None and i == self.mstep: mask_read()
                (k_dots if kind == "k" else v_dots)(i, s)
                consumed.add(n)
                if kind == "k": k_extra(i)

        def snapshot(): return (list(issued), set(consumed), dict(state))
        def restore(sn):
            issued[:] = sn[0]; consumed.clear(); consumed.update(sn[1]); state.update(sn[2])
        def forward(kind, g_from, g_to, d):
            off = 256 if kind == "v" else 0
            for n in range(state["next"], off + 16 * g_to + d): issued.append(n)
            for n in range(off + 16 * g_from, off + 16 * g_to): consumed.add(n)
            state["next"] = off + 16 * g_to + d
            state["done"] = off + 16 * g_to - 1

        def sel_test(kind):
            A(f"s_bitcmp1_b32 s{SMASK}, s34")

        def phase_loop(kind, g0, sfx):
            pre = lambda: head(kind)
            end = (lambda: v_end(False)) if kind == "v" else k_end
            dots = k_dots if kind == "k" else v_dots
            off = 256 if kind == "v" else 0
            assert state["next"] == off + 16 * g0 + D, (kind, state["next"])
            A(f"s_mov_b32 s{SCNT}, {15 - g0}")
            Llo, Lhi, Llo1, Lhib = f"L_{kind}lo{sfx}", f"L_{kind}hi{sfx}", f"L_{kind}lo_k{sfx}", f"L_{kind}hib{sfx}"
            Lx, Lup, Ldn, Lxh = f"L_{kind}x{sfx}", f"L_{kind}up{sfx}", f"L_{kind}dn{sfx}", f"L_{kind}xh{sfx}"
            sn0 = snapshot()
            self.lab(Llo)
            pre()
            if sw:
                sel_test(kind)
                A(f"s_cbranch_scc1 {Lup}")
            steps(kind, g0, D, labels={kk: Llo1} if sw else None, in_loop=True)
            end()
            A(f"s_sub_u32 s{SCNT}, s{SCNT}, 1")
            A(f"s_cmp_lg_u32 s{SCNT}, 0")
            A(f"s_cbranch_scc1 {Llo}")
            if sw:
                A(f"s_branch {Lx}")
                restore(sn0)
                self.lab(Lup)
                issue_upto(off + 16 * g0 + DH - 1)
                snh = snapshot()
                A(f"s_branch {Lhib}")
                self.lab(Lhi)
                pre()
                sel_test(kind)
                A(f"s_cbranch_scc0 {Ldn}")
                self.lab(Lhib)
                steps(kind, g0, DH, in_loop=True)
                end()
                A(f"s_sub_u32 s{SCNT}, s{SCNT}, 1")
                A(f"s_cmp_lg_u32 s{SCNT}, 0")
                A(f"s_cbranch_scc1 {Lhi}")
                A(f"s_branch {Lxh}")
                restore(snh)
                self.lab(Ldn)
                for i in range(kk):
                    n = off + 16 * g0 + i
                    wait_for(n); dots(i, slot(n)); consumed.add(n)
                A(f"s_branch {Llo1}")
                restore(snh)
                self.lab(Lxh)
                dfin = (self.DL or D) if kind == "v" else D
                for i in range(kk):
                    n = off + 16 * g0 + i
                    wait_for(n)
                    issue_upto(min(n + dfin, off + 16 * g0 + 15) if kind == "v" else -1)
                    dots(i, slot(n)); consumed.add(n)
                A(f"s_branch L_{kind}15_k{sfx}")
                self.lab(Lx)
            restore(sn0)
            forward(kind, g0, 15, D)

        npeel = max(2, NF // 16)
        for g in range(npeel):
            if g == npeel - 1: mask_read()
            steps("k", g, D); k_end()
        self.stamp(3)
        phase_loop("k", npeel, "")
        steps("k", 15, D, labels={kk: "L_k15_k"} if sw else None); k_end()
        self.stamp(4)
        issue_upto(256 + self.BT - 1)
        A(f"v_add_u32 v{VLDS}, 0xfffff000, v{VLDS}")
        for g in range(16):
            A(f"ds_read_b32 v{T[g]}, v{VLDS} offset:{L_SP + 256*g}")
        self.allreduce("v_max_f32", VM, VT)
        A(f"v_mov_b32 v{VL}, 0")
        for g in range(16):
            A(f"s_waitcnt lgkmcnt({15 - g})")
            A(f"v_sub_f32 v{T[g]}, v{T[g]}, v{VM}")
            A(f"v_mul_f32 v{T[g]}, s{SLG}, v{T[g]}")
            A(f"v_exp_f32 v{T[g]}, v{T[g]}")
            if g > 0:
                A(f"v_add_f32 v{VL}, v{VL}, v{T[g-1]}")
                A(f"v_cvt_pk_bf16_f32 v{T[g-1]}, v{T[g-1]}, 0")
        A("s_nop 0")
        A(f"v_add_f32 v{VL}, v{VL}, v{T[15]}")
        A(f"v_cvt_pk_bf16_f32 v{T[15]}, v{T[15]}, 0")
        for g in range(1, 16):
            A(f"ds_write_b32 v{VLDS}, v{T[g]} offset:{L_SP + 256*g}")
        A(f"v_mov_b32 v{PL}, v{T[0]}")
        A(f"v_lshlrev_b32 v{PH}, 16, v{T[0]}")
        self.allreduce("v_add_f32", VL, VT)
        A(f"v_lshlrev_b32 v1, 1, v{VPRA}")
        A(f"v_mov_b32 v40, v{VM}")
        A(f"v_mov_b32 v41, v{VL}")
        A("v_mov_b32 v42, 1")
        A("s_mov_b64 exec, 1")
        A(f"ds_write_b64 v1, v[40:41] offset:{L_ML}")
        A(f"ds_write_b32 v{VPRA}, v42 offset:{L_FL}")
        A("s_mov_b64 exec, -1")
        for e in range(8):
            A(f"v_mov_b32 v{ACC[e]}, 0")
        self.stamp(5)
        A("s_nop 1")
        v_pre(False); mask_read(); steps("v", 0, D); v_end(False)
        phase_loop("v", 1, "")
        DL = self.DL if self.DL else D
        steps("v", 15, DL, labels={kk: "L_v15_k"} if sw else None)
        self.stamp(6)
        A("v_lshrrev_b32 v1, 4, v2")
        A("v_and_b32 v7, 15, v2")
        A("v_lshlrev_b32 v1, 3, v1")
        A("v_lshl_add_u32 v1, v7, 5, v1")
        A("s_lshl_b32 s30, s3, 9")
        A("v_add_u32 v1, s30, v1")
        self.reduce8_rows(ACC)
        A(f"ds_write_b64 v1, v[{ACC[0]}:{ACC[1]}] offset:{L_OP}")
        A("s_waitcnt lgkmcnt(0)")
        A("s_barrier")
        self.stamp(7)
        if self.ts3:
            A(f"v_lshlrev_b32 v39, 5, v{VPRA}")
            A("v_lshl_add_u32 v39, v2, 2, v39")
            A(f"ds_read_b32 v40, v39 offset:{L_TS3}")
            A("s_load_dwordx2 s[40:41], s[0:1], 88")
            A("s_waitcnt lgkmcnt(0)")
            A(f"s_add_u32 s40, s40, {WS_TS + 0x40000}")
            A("s_addc_u32 s41, s41, 0")
            A("s_mov_b32 s42, 0x100000")
            A("s_mov_b32 s43, 0x20000")
            A("s_lshl_b32 s44, s2, 2")
            A("s_add_u32 s44, s44, s3")
            A("s_lshl_b32 s44, s44, 7")
            A("v_lshlrev_b32 v41, 2, v2")
            A("s_mov_b32 exec_hi, 0")
            A("buffer_store_dword v40, v41, s[40:43], s44 offen")
            A("s_mov_b32 exec_hi, -1")
            A("s_waitcnt vmcnt(0)")
        self.write_stamps(11 if self.ts2 else 8)
        A("s_endpgm")

    def tag(self, reg):
        self.A(f"v_bfi_b32 v{reg}, s{self.SFF}, v12, v{reg}")

    def timeout_mark(self, code):
        if not self.mark: return
        A = self.A
        l = self.newlab("nomark")
        A("s_cmp_eq_u32 s60, -1")
        A(f"s_cbranch_scc0 {l}")
        A("s_load_dwordx2 s[90:91], s[0:1], 80")
        A("s_waitcnt lgkmcnt(0)")
        A(f"v_mov_b32 v15, {4 * code}")
        A("v_mov_b32 v13, 0xdead")
        A("global_store_dword v15, v13, s[90:91]")
        self.lab(l)

    def poll(self, dst, n, voff, srd, soff, sleep, code=1):
        A = self.A
        lp = self.newlab("poll"); dn = self.newlab("polldone")
        A(f"s_mov_b32 s60, {self.spin_limit}")
        self.lab(lp)
        if n == 8:
            A(f"buffer_load_dwordx4 v[{dst}:{dst+3}], v{voff}, s[{srd}:{srd+3}], s{soff} offen sc1")
            A(f"buffer_load_dwordx4 v[{dst+4}:{dst+7}], v{voff}, s[{srd}:{srd+3}], s{soff} offen offset:16 sc1")
            A("s_waitcnt vmcnt(0)")
            A(f"v_bitop3_b32 v15, v{dst}, v{dst+1}, v{dst+2} bitop3:0x80")
            A(f"v_or3_b32 v13, v{dst}, v{dst+1}, v{dst+2}")
            A(f"v_bitop3_b32 v15, v15, v{dst+3}, v{dst+4} bitop3:0x80")
            A(f"v_or3_b32 v13, v13, v{dst+3}, v{dst+4}")
            A(f"v_bitop3_b32 v15, v15, v{dst+5}, v{dst+6} bitop3:0x80")
            A(f"v_or3_b32 v13, v13, v{dst+5}, v{dst+6}")
            A(f"v_and_b32 v15, v15, v{dst+7}")
            A(f"v_or_b32 v13, v13, v{dst+7}")
        else:
            assert n == 2
            A(f"buffer_load_dwordx2 v[{dst}:{dst+1}], v{voff}, s[{srd}:{srd+3}], s{soff} offen sc1")
            A("s_waitcnt vmcnt(0)")
            A(f"v_and_b32 v15, v{dst}, v{dst+1}")
            A(f"v_or_b32 v13, v{dst}, v{dst+1}")
        A("v_bitop3_b32 v15, v15, v13, v12 bitop3:0x7e")
        A("v_and_b32 v15, 0xff, v15")
        A("v_cmp_ne_u32 vcc, 0, v15")
        A("s_sub_u32 s60, s60, 1")
        A(f"s_cbranch_scc1 {dn}")
        A("s_and_b64 exec, exec, vcc")
        A(f"s_cbranch_scc0 {dn}")
        A(f"s_sleep {sleep}")
        A(f"s_branch {lp}")
        self.lab(dn)
        A("s_mov_b64 exec, -1")
        self.timeout_mark(code)
        for e in range(n):
            A(f"v_and_b32 v{dst+e}, 0xffffff00, v{dst+e}")

    def poll_final(self, dst, voff, srd, soff):
        A = self.A
        T0, T1, T2, T3, T4, T5 = self.T
        hi_cnt, hi_sleep, mid_cnt, mid_sleep = self.fs
        PEND, OKM = 92, 94
        NS = self.nsets
        sets = [40 + 8 * k for k in range(NS)]
        def issue(r):
            A(f"buffer_load_dwordx4 v[{r}:{r+3}], v{voff}, s[{srd}:{srd+3}], s{soff} offen sc1")
            A(f"buffer_load_dwordx4 v[{r+4}:{r+7}], v{voff}, s[{srd}:{srd+3}], s{soff} offen offset:16 sc1")
        def check(r, done):
            A(f"v_bitop3_b32 v15, v{r}, v{r+1}, v{r+2} bitop3:0x80")
            A(f"v_or3_b32 v13, v{r}, v{r+1}, v{r+2}")
            A(f"v_bitop3_b32 v15, v15, v{r+3}, v{r+4} bitop3:0x80")
            A(f"v_or3_b32 v13, v13, v{r+3}, v{r+4}")
            A(f"v_bitop3_b32 v15, v15, v{r+5}, v{r+6} bitop3:0x80")
            A(f"v_or3_b32 v13, v13, v{r+5}, v{r+6}")
            A(f"v_and_b32 v15, v15, v{r+7}")
            A(f"v_or_b32 v13, v13, v{r+7}")
            A("v_bitop3_b32 v15, v15, v13, v12 bitop3:0x7e")
            A("v_and_b32 v15, 0xff, v15")
            A("v_cmp_ne_u32 vcc, 0, v15")
            A("s_nop 1")
            A(f"s_andn2_b64 s[{OKM}:{OKM+1}], exec, vcc")
            A(f"s_and_b64 s[{PEND}:{PEND+1}], exec, vcc")
            A(f"s_mov_b64 exec, s[{OKM}:{OKM+1}]")
            lsk = self.newlab("nomove")
            A(f"s_cbranch_execz {lsk}")
            for e in range(8):
                A(f"v_and_b32 v{dst+e}, 0xffffff00, v{r+e}")
            self.lab(lsk)
            A(f"s_mov_b64 exec, s[{PEND}:{PEND+1}]")
            A(f"s_cbranch_execz {done}")
        slow = self.newlab("fslow"); fast = self.newlab("ffast"); done = self.newlab("fdone"); floop = self.newlab("floop")
        l1 = self.newlab("fs1"); l2 = self.newlab("fs2")
        A(f"s_mov_b32 s60, {self.spin_limit}")
        self.lab(slow)
        issue(sets[0])
        A("s_waitcnt vmcnt(0)")
        check(sets[0], done)
        A("s_sub_u32 s60, s60, 1")
        A(f"s_cbranch_scc1 {done}")
        A(f"s_bcnt1_i32_b64 s{T2}, exec")
        A(f"s_cmp_lt_u32 s{T2}, {mid_cnt}")
        A(f"s_cbranch_scc1 {fast}")
        A(f"s_cmp_lt_u32 s{T2}, {hi_cnt}")
        A(f"s_cbranch_scc1 {l1}")
        A(f"s_sleep {hi_sleep}")
        A(f"s_branch {slow}")
        self.lab(l1)
        A(f"s_sleep {mid_sleep}")
        A(f"s_branch {slow}")
        self.lab(fast)
        for k in range(NS):
            issue(sets[k])
            if k < NS - 1: A(f"s_sleep {self.stag}")
        self.lab(floop)
        for k in range(NS):
            A(f"s_waitcnt vmcnt({2 * (NS - 1)})")
            check(sets[k], done)
            issue(sets[k])
        A("s_sub_u32 s60, s60, 1")
        A(f"s_cbranch_scc0 {floop}")
        self.lab(done)
        A("s_mov_b64 exec, -1")
        self.timeout_mark(4)

    def lds_wait(self, emit_read_and_test, sleep=8):
        A = self.A
        lp = self.newlab("ldsw"); ld = self.newlab("ldsd")
        A(f"s_mov_b32 s60, {self.spin_limit}")
        self.lab(lp)
        emit_read_and_test()
        A(f"s_cbranch_scc1 {ld}")
        A("s_sub_u32 s60, s60, 1")
        A(f"s_cbranch_scc1 {ld}")
        A(f"s_sleep {sleep}")
        A(f"s_branch {lp}")
        self.lab(ld)
        self.timeout_mark(5)

    def helper(self):
        A = self.A
        XS, WQS, WOS, WGS, WUS, WDS, OUTS, WSS = 12, 16, 16, 20, 24, 28, 32, 40
        SH, SB, SHW, SCG, SU, STAG, SFF = 61, 62, 63, 4, 5, 6, 7
        T0, T1, T2, T3, T4, T5 = 84, 85, 86, 87, 88, 89
        self.T = (T0, T1, T2, T3, T4, T5)
        self.SFF, self.STAG = SFF, STAG
        W0 = 64
        ACC = list(range(16, 24))
        self.lab("L_helper")
        A("s_load_dwordx2 s[44:45], s[0:1], 0")
        A("s_load_dwordx2 s[46:47], s[0:1], 24")
        A("s_load_dwordx2 s[50:51], s[0:1], 88")
        A(f"s_sub_u32 s{SHW}, s3, 4")
        if self.prefetch_code:
            lnp = self.newlab("nopf")
            A(f"s_cmp_eq_u32 s{SHW}, 3")
            A(f"s_cbranch_scc0 {lnp}")
            A("s_getpc_b64 s[90:91]")
            self.lab("L_pc_ref")
            A(f"s_sub_u32 s90, s90, L_pc_ref-{KNAME}")
            A("s_subb_u32 s91, s91, 0")
            A(f"s_lshr_b32 s{T0}, s2, 3")
            A(f"s_lshl_b32 s{T0}, s{T0}, 10")
            A("v_lshlrev_b32 v10, 4, v2")
            A(f"v_add_u32 v10, s{T0}, v10")
            A("PREFETCH_PLACEHOLDER")
            self.lab(lnp)
        A(f"s_and_b32 s{SH}, s2, 7")
        A(f"s_bfe_u32 s{T0}, s2, 0x20003")
        A(f"s_lshl_b32 s{T0}, s{T0}, 3")
        A(f"s_add_u32 s{SH}, s{SH}, s{T0}")
        A(f"s_lshr_b32 s{SB}, s2, 6")
        A(f"s_and_b32 s{SCG}, s2, 7")
        A(f"s_lshl_b32 s{SCG}, s{SCG}, 3")
        A(f"s_bfe_u32 s{T0}, s2, 0x30003")
        A(f"s_add_u32 s{SCG}, s{SCG}, s{T0}")
        A(f"s_and_b32 s{SU}, s2, 7")
        A(f"s_mul_i32 s{SU}, s{SU}, 6")
        A(f"s_add_u32 s{SU}, s{SU}, s{T0}")
        A(f"s_cmp_ge_u32 s{T0}, 6")
        A(f"s_cselect_b32 s{SU}, 63, s{SU}")
        if self.ffn4:
            A(f"s_and_b32 s{T0}, s{T0}, 3")
            A(f"s_cmp_lg_u32 s{T0}, s{SB}")
            A(f"s_cselect_b32 s{SU}, 63, s{SU}")
        A("v_lshrrev_b32 v3, 4, v2")
        A("v_and_b32 v4, 15, v2")
        A(f"s_lshl_b32 s{T1}, s{SB}, 10")
        A("v_lshlrev_b32 v5, 4, v2")
        A(f"v_add_u32 v5, s{T1}, v5")
        A(f"s_lshl_b32 s{T2}, s{SHW}, 7")
        A("v_lshl_add_u32 v6, v4, 2, v3")
        A(f"v_add_u32 v6, s{T2}, v6")
        A("v_lshlrev_b32 v7, 1, v6")
        A(f"v_add_u32 v7, s{T1}, v7")
        A(f"v_add_u32 v8, s{T2}, v3")
        A("v_lshlrev_b32 v8, 13, v8")
        A(f"s_lshl_b32 s{T3}, s{SH}, 8")
        A(f"v_lshl_add_u32 v10, v4, 4, s{T3}")
        A("v_add_u32 v8, v8, v10")
        A(f"s_lshl_b32 s{T5}, s{SB}, 7")
        A(f"s_add_u32 s{T5}, s{T5}, {WS_N}")
        A("s_waitcnt lgkmcnt(0)")
        A(f"s_load_dword s{STAG}, s[50:51], s{T5}")
        self.srd(XS, 44, 4096)
        self.srd(WQS, 46, 0 if self.skip_wq else 0x400000)
        A(f"buffer_load_dwordx4 v[24:27], v5, s[{XS}:{XS+3}], 0 offen")
        A(f"buffer_load_ushort v28, v7, s[{XS}:{XS+3}], 0 offen")
        A(f"buffer_load_ushort v29, v7, s[{XS}:{XS+3}], 0 offen offset:128")
        A(f"s_mov_b32 s{T4}, 0")
        def wq_issue(i):
            A(f"buffer_load_dwordx4 v[{W0+4*i}:{W0+4*i+3}], v8, s[{WQS}:{WQS+3}], s{T4} offen {self.wflags}")
            if i < 31: A(f"s_add_u32 s{T4}, s{T4}, 0x8000")
        DQ = self.DQ
        for i in range(DQ):
            wq_issue(i)
        self.srd(WSS, 50, WS_SZ)
        nwarm = 0
        if self.tlbwarm:
            lw = self.newlab("nowarm")
            A(f"s_cmp_eq_u32 s{SHW}, 2"); A(f"s_cbranch_scc0 {lw}")
            A("s_load_dwordx2 s[52:53], s[0:1], 16")
            A("s_load_dwordx2 s[54:55], s[0:1], 32")
            A("s_load_dwordx4 s[56:59], s[0:1], 48")
            A("s_load_dwordx4 s[92:95], s[0:1], 64")
            A(f"s_lshl_b32 s{T0}, s{SB}, 5"); A(f"s_add_u32 s{T0}, s{T0}, s{SH}"); A(f"s_lshl_b32 s{T0}, s{T0}, 1")
            A(f"s_bfe_u32 s{T1}, s2, 0x10005"); A(f"s_add_u32 s{T0}, s{T0}, s{T1}"); A(f"s_lshl_b32 s{T0}, s{T0}, 20")
            A(f"v_mov_b32 v50, s{T0}")
            A(f"s_lshl_b32 s{T1}, s{SH}, 17"); A(f"v_mov_b32 v51, s{T1}")
            A("v_mov_b32 v52, 0")
            A(f"s_lshl_b32 s{T1}, s2, 11"); A(f"v_mov_b32 v53, s{T1}")
            A("s_waitcnt lgkmcnt(0)")
            A("s_mov_b64 exec, 1")
            A("global_load_dword v54, v50, s[52:53] nt")
            A("global_load_dword v55, v51, s[54:55] nt")
            A("global_load_dword v56, v52, s[56:57] nt")
            A("global_load_dword v57, v52, s[58:59] nt")
            A("global_load_dword v58, v52, s[92:93] nt")
            A("global_load_dword v59, v52, s[94:95] nt")
            A("global_load_dword v60, v53, s[50:51] nt")
            A("s_mov_b64 exec, -1")
            self.lab(lw)
        self.stamp(1)
        A("v_mov_b32 v12, 0")
        if self.ctl and self.mask_src == 'ffn':
            A(f"s_cmp_lt_u32 s{SU}, 43")
            A(f"s_cselect_b32 s{T0}, {self.mask}, {self.mask2}")
            A(f"v_mov_b32 v15, s{T0}")
        else:
            A(f"v_mov_b32 v15, {self.mask if self.ctl else 0}")
        A("v_lshlrev_b32 v13, 2, v2")
        A("s_mov_b64 exec, 15")
        A(f"ds_write_b32 v13, v12 offset:{L_FL}")
        A(f"ds_write_b32 v13, v12 offset:{L_PR}")
        A(f"ds_write_b32 v13, v15 offset:{L_MK}")
        A("s_mov_b64 exec, -1")
        A(f"s_waitcnt vmcnt({DQ})")
        for j in range(4):
            A(f"v_lshlrev_b32 v{36+2*j}, 16, v{24+j}")
            A(f"v_and_b32 v{37+2*j}, 0xffff0000, v{24+j}")
        A("v_add_f32 v44, v36, v37")
        for j in range(2, 8):
            A(f"v_add_f32 v44, v44, v{36+j}")
        self.allreduce("v_add_f32", 44, 45)
        A("v_mul_f32 v44, 0x3b000000, v44")
        for j in range(8):
            A(f"v_sub_f32 v{36+j}, v{36+j}, v44")
        A("v_mul_f32 v46, v36, v36")
        for j in range(1, 8):
            A(f"v_fmac_f32 v46, v{36+j}, v{36+j}")
        self.allreduce("v_add_f32", 46, 45)
        A("v_mul_f32 v46, 0x3b000000, v46")
        self.round_bf16(44, 44)
        self.round_bf16(46, 46)
        A("v_add_f32 v46, 0x3727c5ac, v46")
        self.round_bf16(46, 46)
        A("v_sqrt_f32 v47, v46")
        A("s_nop 0")
        A("v_rcp_f32 v45, v47")
        A("v_fma_f32 v48, -v47, v47, v46")
        A("v_mul_f32 v45, 0.5, v45")
        A("v_fmac_f32 v47, v48, v45")
        self.round_bf16(47, 47)
        A("v_rcp_f32 v45, v47")
        for reg in (28, 29):
            A(f"v_lshlrev_b32 v{reg}, 16, v{reg}")
            A(f"v_sub_f32 v{reg}, v{reg}, v44")
            self.round_bf16(reg, reg)
            A(f"v_mul_f32 v48, v{reg}, v45")
            A(f"v_fma_f32 v49, -v48, v47, v{reg}")
            A(f"v_fmac_f32 v48, v49, v45")
            A(f"v_cvt_pk_bf16_f32 v{reg}, v48, 0")
        XL = (28, 29); XH = (30, 31)
        A("v_lshlrev_b32 v30, 16, v28")
        A("v_lshlrev_b32 v31, 16, v29")
        A("v_lshlrev_b32 v10, 2, v6")
        A(f"ds_write_b32 v10, v28 offset:{L_XN}")
        A(f"ds_write_b32 v10, v29 offset:{L_XN + 256}")
        for e in range(8):
            A(f"v_mov_b32 v{ACC[e]}, 0")
        self.stamp(2)
        for i in range(32):
            A(f"s_waitcnt vmcnt({min(DQ - 1, 31 - i)})")
            if i + DQ < 32: wq_issue(i + DQ)
            s = W0 + 4 * i
            for e in range(4):
                A(f"v_dot2c_f32_bf16_dpp v{ACC[2*e]}, v{XL[i>>4]}, v{s+e} row_newbcast:{i&15} {DPPF}")
                A(f"v_dot2c_f32_bf16_dpp v{ACC[2*e+1]}, v{XH[i>>4]}, v{s+e} row_newbcast:{i&15} {DPPF}")
        A("v_lshlrev_b32 v11, 3, v3")
        A("v_lshl_add_u32 v11, v4, 5, v11")
        A(f"s_lshl_b32 s{T0}, s{SHW}, 9")
        A(f"v_add_u32 v10, s{T0}, v11")
        self.reduce8_rows(ACC)
        A(f"ds_write_b64 v10, v[{ACC[0]}:{ACC[1]}] offset:{L_QP}")
        A("s_waitcnt lgkmcnt(0)")
        self.stamp(3)
        A("s_barrier")
        if self.helper_exit:
            for k in range(4, 9): self.stamp(k)
            self.write_stamps(9)
            A("s_endpgm")
        A("s_load_dwordx8 s[52:59], s[0:1], 48")
        A("s_load_dwordx2 s[46:47], s[0:1], 32")
        A(f"s_add_u32 s{STAG}, s{STAG}, 1")
        A(f"s_and_b32 s{T0}, s{STAG}, 0xff")
        A(f"v_mov_b32 v12, s{T0}")
        A(f"s_movk_i32 s{SFF}, 0xff")
        if self.ctl:
            A("v_mov_b32 v32, 0")
            lc0 = self.newlab("noctl0")
            A(f"s_cmp_eq_u32 s{SHW}, {self.ctl_wave}"); A(f"s_cbranch_scc0 {lc0}")
            A("s_waitcnt lgkmcnt(0)")
            self.ctl_setup(STAG)
            for c in range(self.ncp_early):
                self.ctl_checkpoint(WSS, c)
            self.lab(lc0)
        A("v_lshrrev_b32 v9, 3, v2")
        A(f"s_lshl_b32 s{T0}, s{SB}, 9")
        A(f"s_lshl_b32 s{T1}, s{SCG}, 3")
        A(f"s_add_u32 s{T0}, s{T0}, s{T1}")
        A(f"v_add_u32 v9, s{T0}, v9")
        A("v_lshlrev_b32 v9, 1, v9")
        A(f"buffer_load_ushort v14, v9, s[{XS}:{XS+3}], 0 offen")
        A("s_waitcnt lgkmcnt(0)")
        self.srd(WOS, 46, 0x400000)
        self.srd(WGS, 52, 512 * 2752)
        self.srd(WUS, 54, 512 * 2752)
        self.srd(WDS, 56, 1376 * 1024)
        self.srd(OUTS, 58, 4096)
        lnf = self.newlab("noffn")
        A(f"s_cmp_eq_u32 s{SHW}, {self.ffn_wave}"); A(f"s_cbranch_scc0 {lnf}")
        A(f"s_cmp_ge_u32 s{SU}, 43"); A(f"s_cbranch_scc1 {lnf}")
        if self.do_ffn:
            if self.ffn4: self.ffn_unit4(XS, WGS, WUS, WDS, WSS, SU)
            else: self.ffn_unit(WGS, WUS, WDS, WSS, SU, SB)
        self.lab(lnf)
        A("v_lshlrev_b32 v8, 11, v3")
        A("v_lshl_add_u32 v8, v4, 4, v8")
        A(f"s_lshl_b32 s{T0}, s{SH}, 17")
        A(f"s_lshl_b32 s{T1}, s{SHW}, 8")
        A(f"s_add_u32 s{T0}, s{T0}, s{T1}")
        A(f"v_add_u32 v8, s{T0}, v8")
        A(f"s_mov_b32 s{T4}, 0")
        A(f"s_mov_b32 s{T0}, 0x05040100")
        A(f"s_mov_b32 s{T1}, 0x07060302")
        P = [[None] * 8 for _ in range(16)]
        spare = [W0 + 128]
        def wo_issue(n):
            k, half = n >> 1, n & 1
            r0 = W0 + 8 * k + 4 * half
            A(f"buffer_load_dwordx4 v[{r0}:{r0+3}], v8, s[{WOS}:{WOS+3}], s{T4} offen offset:{1024*half} {self.woflags}")
            if half == 1 and k < 15: A(f"s_add_u32 s{T4}, s{T4}, 0x2000")
        def wo_consume(n):
            k, half = n >> 1, n & 1
            if half == 0: return
            for j in range(4):
                a, b_ = W0 + 8 * k + j, W0 + 8 * k + 4 + j
                A(f"v_perm_b32 v{spare[0]}, v{b_}, v{a}, s{T0}")
                A(f"v_perm_b32 v{a}, v{b_}, v{a}, s{T1}")
                P[k][2 * j] = spare[0]
                P[k][2 * j + 1] = a
                spare[0] = b_
        if self.do_wo:
            self.paced(32, self.DO, wo_issue, wo_consume)
        else:
            for k in range(16):
                for e in range(8): P[k][e] = W0 + 8 * k + e
        self.stamp(4)
        ljoin = self.newlab("join")
        A(f"s_cmp_eq_u32 s{SHW}, 1"); A(f"s_cbranch_scc0 {ljoin}")
        if self.do_exch: self.exchange(WSS, SB, SCG)
        self.lab(ljoin)
        if self.ctl:
            lc = self.newlab("noctl")
            A(f"s_cmp_eq_u32 s{SHW}, {self.ctl_wave}"); A(f"s_cbranch_scc0 {lc}")
            for c in range(self.ncp_early, len(self.cps)):
                self.ctl_checkpoint(WSS, c)
            self.lab(lc)
        if not self.do_tail:
            for k in range(5, 9): self.stamp(k)
            self.write_stamps(9)
            A("s_endpgm")
        self.stamp(5)
        A("s_waitcnt vmcnt(0) lgkmcnt(0)")
        A("s_barrier")
        self.stamp(6)
        A("v_mov_b32 v10, 0")
        A(f"ds_read_b128 v[24:27], v10 offset:{L_SC}")
        for w in range(4):
            A(f"ds_read_b64 v[{32+2*w}:{33+2*w}], v11 offset:{L_OP + 512*w}")
        for e in range(8):
            A(f"v_mov_b32 v{ACC[e]}, 0")
        if self.ytr:
            A(f"s_lshl_b32 s{T0}, s{SB}, 17")
            A(f"s_lshl_b32 s{T1}, s{SHW}, 15")
            A(f"s_add_u32 s{T0}, s{T0}, s{T1}")
            A(f"s_and_b32 s{T1}, s2, 63")
            A(f"s_lshl_b32 s{T1}, s{T1}, 5")
            A(f"s_add_u32 s{T0}, s{T0}, s{T1}")
            A("v_lshlrev_b32 v10, 3, v3")
            A("v_lshl_add_u32 v11, v4, 11, v10")
        else:
            A(f"s_lshl_b32 s{T0}, s2, 11")
            A(f"s_lshl_b32 s{T1}, s{SHW}, 9")
            A(f"s_add_u32 s{T0}, s{T0}, s{T1}")
        A("s_waitcnt lgkmcnt(0)")
        A("v_mul_f32 v28, v24, v32")
        A("v_mul_f32 v29, v24, v33")
        for w in range(1, 4):
            A(f"v_fmac_f32 v28, v{24+w}, v{32+2*w}")
            A(f"v_fmac_f32 v29, v{24+w}, v{33+2*w}")
        A("v_cvt_pk_bf16_f32 v28, v28, v29")
        A("s_nop 1")
        for k in range(16):
            for e in range(8):
                A(f"v_dot2c_f32_bf16_dpp v{ACC[e]}, v28, v{P[k][e]} row_newbcast:{k} {DPPF}")
        A("s_nop 2")
        self.reduce8_rows(ACC)
        self.tag(ACC[0]); self.tag(ACC[1])
        A(f"buffer_store_dwordx2 v[{ACC[0]}:{ACC[1]}], v11, s[{WSS}:{WSS+3}], s{T0} offen {self.pubflags}")
        self.stamp(7)
        lend = self.newlab("hend")
        A(f"s_cmp_eq_u32 s{SHW}, 0")
        A(f"s_cbranch_scc0 {lend}")
        if not self.do_final: A(f"s_branch {lend}")
        A("v_lshrrev_b32 v10, 3, v2")
        A("v_lshlrev_b32 v10, 2, v10")
        A(f"ds_read_b32 v24, v10 offset:{L_G}")
        if self.ytr:
            A("v_lshlrev_b32 v10, 5, v2")
            A(f"s_lshl_b32 s{T0}, s{SB}, 17")
            A(f"s_lshl_b32 s{T1}, s{SCG}, 11")
        else:
            A("v_lshlrev_b32 v10, 11, v2")
            A(f"s_lshl_b32 s{T0}, s{SB}, 17")
            A(f"s_lshl_b32 s{T1}, s{SCG}, 5")
        A(f"s_add_u32 s{T0}, s{T0}, s{T1}")
        if self.fpoll == 'simple':
            self.poll(32, 8, 10, WSS, T0, self.fsleep)
        else:
            self.poll_final(32, 10, WSS, T0)
        A("s_nop 1")
        self.reduce8_wave(list(range(32, 40)))
        A("s_waitcnt lgkmcnt(0)")
        self.round_bf16(32, 32)
        A("v_mul_f32 v32, v32, v24")
        self.round_bf16(32, 32)
        A("v_lshlrev_b32 v14, 16, v14")
        A("v_add_f32 v32, v14, v32")
        A("v_cvt_pk_bf16_f32 v32, v32, v32")
        A("v_and_b32 v10, 7, v2")
        A("v_cmp_eq_u32 vcc, 0, v10")
        A("s_nop 1")
        A(f"s_and_saveexec_b64 s[{T2}:{T3}], vcc")
        A(f"buffer_store_short v32, v9, s[{OUTS}:{OUTS+3}], 0 offen {self.outflags}")
        A(f"s_mov_b64 exec, s[{T2}:{T3}]")
        A(f"s_and_b32 s{T0}, s2, 63")
        A(f"s_cmp_eq_u32 s{T0}, 0")
        A(f"s_cbranch_scc0 {lend}")
        A(f"v_mov_b32 v10, s{T5}")
        A(f"v_mov_b32 v13, s{STAG}")
        A("s_mov_b64 exec, 1")
        A(f"buffer_store_dword v13, v10, s[{WSS}:{WSS+3}], 0 offen {self.outflags}")
        A("s_mov_b64 exec, -1")
        self.lab(lend)
        self.stamp(8)
        self.write_stamps(9, extra=range(52, 60) if self.ctl else ())
        A("s_endpgm")

    def ctl_setup(self, STAG):
        A = self.A
        T0, T1, T2, T3, T4, T5 = self.T
        A("v_mov_b32 v10, 0")
        A(f"ds_read_b32 v24, v10 offset:{L_MK}")
        A(f"s_and_b32 s{T2}, s{STAG}, 0xffff")
        A(f"s_lshl_b32 s93, s{T2}, 16")
        A("v_lshlrev_b32 v25, 2, v2")
        A("v_and_b32 v31, 7, v2")
        A(f"s_lshr_b32 s{T0}, s2, 3")
        A(f"s_and_b32 s{T1}, s2, 7")
        A(f"s_sub_u32 s{T1}, s{T0}, s{T1}")
        A(f"v_add_u32 v32, s{T1}, v31")
        A("v_lshrrev_b32 v33, 3, v2")
        A("v_lshl_add_u32 v32, v33, 2, v32")
        A("v_and_b32 v32, 7, v32")
        A(f"s_and_b32 s{T0}, s{T0}, 24")
        A(f"v_or_b32 v32, s{T0}, v32")
        A("v_lshl_add_u32 v32, v32, 3, v31")
        A("v_lshlrev_b32 v32, 7, v32")
        A("s_waitcnt lgkmcnt(0)")
        A("v_readfirstlane_b32 s92, v24")

    def ctl_checkpoint(self, WSS, c):
        A = self.A
        T0, T1, T2, T3, T4, T5 = self.T
        SM, NB = 92, self.nbud
        gc, gr, gs, nmax = self.cps[c]
        A("v_mov_b32 v10, 0")
        def wait_prog(g):
            def test():
                A(f"ds_read_b32 v30, v10 offset:{L_PR}")
                A("s_waitcnt lgkmcnt(0)")
                A(f"v_readfirstlane_b32 s{T0}, v30")
                A("s_nop 3")
                A(f"s_cmp_ge_u32 s{T0}, {g}")
            self.lds_wait(test, sleep=self.csleep)
        if gc > 0: wait_prog(gc)
        A("s_memrealtime s[94:95]")
        A(f"s_mov_b32 s{T1}, {WS_TT + 32768 * c}")
        A(f"s_lshl_b32 s{T3}, s2, 7")
        A(f"v_mov_b32 v26, s{T3}")
        A("s_waitcnt lgkmcnt(0)")
        A("s_and_b32 s94, s94, 0xffff")
        A("s_or_b32 s94, s94, s93")
        A("v_mov_b32 v27, s94")
        A("s_mov_b64 exec, 1")
        A(f"buffer_store_dword v27, v26, s[{WSS}:{WSS+3}], s{T1} offen {self.pubflags}")
        A("s_mov_b64 exec, -1")
        wait_prog(gr)
        A("v_mov_b32 v28, 0")
        A(f"s_mov_b64 exec, {(1 << NB) - 1}")
        A(f"buffer_load_dword v28, v32, s[{WSS}:{WSS+3}], s{T1} offen sc1")
        A("s_mov_b64 exec, -1")
        A("s_waitcnt vmcnt(0)")
        A("v_xor_b32 v29, s93, v28")
        A("v_lshrrev_b32 v29, 16, v29")
        A("v_cmp_eq_u32 vcc, 0, v29")
        A("v_sub_u32 v28, v28, v27")
        A("v_bfe_i32 v28, v28, 0, 16")
        A("v_add_u32 v29, 1500, v28")
        A(f"s_mov_b64 s[{T2}:{T3}], vcc")
        A("v_cmp_gt_u32 vcc, 3000, v29")
        A(f"s_and_b64 s[{T2}:{T3}], s[{T2}:{T3}], {(1 << NB) - 1}")
        A(f"s_and_b64 vcc, vcc, s[{T2}:{T3}]")
        A("v_cvt_f32_i32 v28, v28")
        A(f"s_bcnt1_i32_b64 s{T0}, vcc")
        A("v_cndmask_b32 v28, 0, v28, vcc")
        A(f"s_max_u32 s{T0}, s{T0}, 1")
        A(f"v_cvt_f32_u32 v29, s{T0}")
        self.allreduce("v_add_f32", 28, 30)
        A("v_rcp_f32 v29, v29")
        A("s_nop 0")
        A("v_mul_f32 v28, v28, v29")
        import struct
        f2h = lambda x: "0x%08x" % struct.unpack("<I", struct.pack("<f", x))[0]
        cd = c - self.ncp_early
        if self.ts and 0 <= cd < 4:
            A("s_nop 0")
            A(f"v_readfirstlane_b32 s{52 + cd}, v28")
            A(f"s_mov_b32 s{56 + cd}, s{T0}")
        A(f"v_mul_f32 v28, {f2h(-1.0 / self.tau)}, v28")
        A(f"v_add_f32 v28, {f2h(0.5 - self.bias / self.tau)}, v28")
        A("v_max_f32 v28, 0, v28")
        A("v_cvt_u32_f32 v28, v28")
        A(f"v_min_u32 v28, {nmax}, v28")
        A("s_nop 0")
        A(f"v_readfirstlane_b32 s{T0}, v28")
        A("s_nop 3")
        A(f"s_bfm_b32 s{T0}, s{T0}, {gs}")
        A(f"s_or_b32 s{SM}, s{SM}, s{T0}")
        A(f"v_mov_b32 v28, s{SM}")
        A("s_mov_b64 exec, 15")
        A(f"ds_write_b32 v25, v28 offset:{L_MK}")
        A("s_mov_b64 exec, -1")

    def layernorm_row(self):
        A = self.A
        for j in range(4):
            A(f"v_lshlrev_b32 v{36+2*j}, 16, v{24+j}")
            A(f"v_and_b32 v{37+2*j}, 0xffff0000, v{24+j}")
        A("v_add_f32 v44, v36, v37")
        for j in range(2, 8):
            A(f"v_add_f32 v44, v44, v{36+j}")
        self.allreduce("v_add_f32", 44, 45)
        A("v_mul_f32 v44, 0x3b000000, v44")
        for j in range(8):
            A(f"v_sub_f32 v{36+j}, v{36+j}, v44")
        A("v_mul_f32 v46, v36, v36")
        for j in range(1, 8):
            A(f"v_fmac_f32 v46, v{36+j}, v{36+j}")
        self.allreduce("v_add_f32", 46, 45)
        A("v_mul_f32 v46, 0x3b000000, v46")
        self.round_bf16(44, 44)
        self.round_bf16(46, 46)
        A("v_add_f32 v46, 0x3727c5ac, v46")
        self.round_bf16(46, 46)
        A("v_sqrt_f32 v47, v46")
        A("s_nop 0")
        A("v_rcp_f32 v45, v47")
        A("v_fma_f32 v48, -v47, v47, v46")
        A("v_mul_f32 v45, 0.5, v45")
        A("v_fmac_f32 v47, v48, v45")
        self.round_bf16(47, 47)
        A("v_rcp_f32 v45, v47")

    def normalise(self, reg):
        A = self.A
        A(f"v_sub_f32 v{reg}, v{reg}, v44")
        self.round_bf16(reg, reg)
        A(f"v_mul_f32 v48, v{reg}, v45")
        A(f"v_fma_f32 v49, -v48, v47, v{reg}")
        A(f"v_fmac_f32 v48, v49, v45")
        A(f"v_cvt_pk_bf16_f32 v{reg}, v48, 0")

    def ffn_unit4(self, XS, WGS, WUS, WDS, WSS, SU):
        A = self.A
        T0, T1, T2, T3, T4, T5 = self.T
        G = [[64 + 8 * b + e for e in range(8)] for b in range(4)]
        U = [[96 + 8 * b + e for e in range(8)] for b in range(4)]
        LD = 200
        for b in range(4):
            A(f"s_load_dword s{52 + b}, s[50:51], {hex(WS_N + 128 * b)}")
        A("v_lshlrev_b32 v50, 4, v2")
        A("v_lshlrev_b32 v51, 5, v2")
        A(f"s_mov_b32 s{T3}, 4")
        lp = self.newlab("ln4")
        self.lab(lp)
        A(f"buffer_load_dwordx4 v[24:27], v50, s[{XS}:{XS+3}], 0 offen")
        A("s_waitcnt vmcnt(0)")
        self.layernorm_row()
        for j in range(4):
            A(f"v_lshlrev_b32 v{52+2*j}, 16, v{24+j}")
            A(f"v_and_b32 v{53+2*j}, 0xffff0000, v{24+j}")
        for j in range(8):
            self.normalise(52 + j)
        A(f"ds_write_b128 v51, v[52:55] offset:{L_X4}")
        A(f"ds_write_b128 v51, v[56:59] offset:{L_X4 + 16}")
        A("v_add_u32 v50, 0x400, v50")
        A("v_add_u32 v51, 0x800, v51")
        A(f"s_sub_u32 s{T3}, s{T3}, 1")
        A(f"s_cmp_lg_u32 s{T3}, 0")
        A(f"s_cbranch_scc1 {lp}")
        for b in range(4):
            for e in range(8):
                A(f"v_mov_b32 v{G[b][e]}, 0"); A(f"v_mov_b32 v{U[b][e]}, 0")
        A("v_lshrrev_b32 v60, 2, v2")
        A(f"s_movk_i32 s{T0}, 2752")
        A(f"v_mul_lo_u32 v61, v60, s{T0}")
        A("v_and_b32 v62, 3, v2")
        A("v_lshl_add_u32 v61, v62, 4, v61")
        A(f"s_lshl_b32 s{T1}, s{SU}, 6")
        A(f"v_add_u32 v61, s{T1}, v61")
        A("v_lshlrev_b32 v60, 2, v60")
        A(f"s_mov_b32 s{T4}, 0")
        A(f"s_mov_b32 s{T3}, 8")
        XL = [[16 + 4 * j + b for b in range(4)] for j in range(4)]
        XH = [[32 + 4 * j + b for b in range(4)] for j in range(4)]
        def f1_issue(j):
            A(f"buffer_load_dwordx4 v[{LD+8*j}:{LD+8*j+3}], v61, s[{WGS}:{WGS+3}], s{T4} offen {self.fflags}")
            A(f"buffer_load_dwordx4 v[{LD+8*j+4}:{LD+8*j+7}], v61, s[{WUS}:{WUS+3}], s{T4} offen {self.fflags}")
            A(f"s_add_u32 s{T4}, s{T4}, {16*2752}")
        def f1_consume(j):
            for b in range(4):
                for e in range(4):
                    A(f"v_dot2c_f32_bf16 v{G[b][2*e]}, v{XL[j][b]}, v{LD+8*j+e}")
                    A(f"v_dot2c_f32_bf16 v{G[b][2*e+1]}, v{XH[j][b]}, v{LD+8*j+e}")
                for e in range(4):
                    A(f"v_dot2c_f32_bf16 v{U[b][2*e]}, v{XL[j][b]}, v{LD+8*j+4+e}")
                    A(f"v_dot2c_f32_bf16 v{U[b][2*e+1]}, v{XH[j][b]}, v{LD+8*j+4+e}")
        def f1_pre():
            for j in range(4):
                for b in range(4):
                    A(f"ds_read_b32 v{XL[j][b]}, v60 offset:{L_X4 + 2048*b + 64*j}")
                if j == 1: A("s_waitcnt lgkmcnt(0)")
            A("v_add_u32 v60, 256, v60")
            A("s_waitcnt lgkmcnt(0)")
            for j in range(4):
                for b in range(4):
                    A(f"v_lshlrev_b32 v{XH[j][b]}, 16, v{XL[j][b]}")
        A("s_waitcnt lgkmcnt(0)")
        lp = self.newlab("f1")
        self.lab(lp)
        self.paced(4, self.DF1, f1_issue, f1_consume, per=2, pre=f1_pre)
        A(f"s_sub_u32 s{T3}, s{T3}, 1")
        A(f"s_cmp_lg_u32 s{T3}, 0")
        A(f"s_cbranch_scc1 {lp}")
        A("v_and_b32 v44, 3, v2")
        A("v_lshlrev_b32 v44, 3, v44")
        A("v_bfe_u32 v45, v2, 2, 2")
        A("v_add_u32 v44, v44, v45")
        A("v_bfe_u32 v45, v2, 4, 1")
        A("v_lshl_add_u32 v44, v45, 2, v44")
        A("v_lshlrev_b32 v44, 2, v44")
        for b in range(4):
            g, u = G[b], U[b]
            for e in range(8):
                A(f"v_permlane32_swap_b32 v{g[e]}, v{u[e]}")
            for e in range(8):
                A(f"v_add_f32 v{g[e]}, v{g[e]}, v{u[e]}")
            for e in range(4):
                A(f"v_permlane16_swap_b32 v{g[e]}, v{g[e+4]}")
            for e in range(4):
                A(f"v_add_f32 v{g[e]}, v{g[e]}, v{g[e+4]}")
            A("s_nop 0")
            for e in range(2):
                A(f"v_add_f32_dpp v{g[e]}, v{g[e]}, v{g[e]} row_ror:8 row_mask:0xf bank_mask:0x3")
                A(f"v_add_f32_dpp v{g[e]}, v{g[e+2]}, v{g[e+2]} row_ror:8 row_mask:0xf bank_mask:0xc")
            A("s_nop 1")
            A(f"v_add_f32_dpp v{g[0]}, v{g[0]}, v{g[0]} row_shl:4 row_mask:0xf bank_mask:0x5")
            A(f"v_add_f32_dpp v{g[0]}, v{g[1]}, v{g[1]} row_shr:4 row_mask:0xf bank_mask:0xa")
            A(f"v_mov_b32 v{u[0]}, v{g[0]}")
            A("s_nop 1")
            A(f"v_permlane32_swap_b32 v{g[0]}, v{u[0]}")
            self.round_bf16(g[0], g[0])
            self.round_bf16(u[0], u[0])
            x = g[0]
            A(f"v_mul_f32 v43, v{x}, v{x}")
            A(f"v_mul_f32 v43, v43, v{x}")
            A("v_mul_f32 v43, 0x3d372713, v43")
            A(f"v_add_f32 v43, v{x}, v43")
            A("v_mul_f32 v43, 0xc0135761, v43")
            A("v_exp_f32 v43, v43")
            A("s_nop 0")
            A("v_add_f32 v43, 1.0, v43")
            A("v_rcp_f32 v43, v43")
            A("s_nop 0")
            A(f"v_mul_f32 v43, v{x}, v43")
            self.round_bf16(43, 43)
            A(f"v_mul_f32 v43, v43, v{u[0]}")
            A("v_cvt_pk_bf16_f32 v43, v43, 0")
            A("s_mov_b32 exec_hi, 0")
            A(f"ds_write_b32 v44, v43 offset:{L_H4 + 128*b}")
            A("s_mov_b32 exec_hi, -1")
        A("v_lshlrev_b32 v44, 2, v4")
        HL = [[16 + 2 * b, 17 + 2 * b] for b in range(4)]
        HH = [[24 + 2 * b, 25 + 2 * b] for b in range(4)]
        for b in range(4):
            A(f"ds_read_b32 v{HL[b][0]}, v44 offset:{L_H4 + 128*b}")
            A(f"ds_read_b32 v{HL[b][1]}, v44 offset:{L_H4 + 128*b + 64}")
        Y = [[64 + 8 * b + e for e in range(8)] for b in range(4)]
        for b in range(4):
            for e in range(8):
                A(f"v_mov_b32 v{Y[b][e]}, 0")
        A("s_waitcnt lgkmcnt(0)")
        for b in range(4):
            for k in range(2):
                A(f"v_lshlrev_b32 v{HH[b][k]}, 16, v{HL[b][k]}")
        A("v_lshlrev_b32 v61, 4, v2")
        A(f"s_lshl_b32 s{T4}, s{SU}, 15")
        def f2_issue(i):
            j = i % 8
            A(f"buffer_load_dwordx4 v[{LD+4*j}:{LD+4*j+3}], v61, s[{WDS}:{WDS+3}], s{T4} offen {self.fflags}")
            A(f"s_add_u32 s{T4}, s{T4}, 0x400")
        def f2_consume(i):
            j = i % 8
            for b in range(4):
                for e in range(4):
                    A(f"v_dot2c_f32_bf16_dpp v{Y[b][2*e]}, v{HL[b][i>>4]}, v{LD+4*j+e} row_newbcast:{i&15} {DPPF}")
                    A(f"v_dot2c_f32_bf16_dpp v{Y[b][2*e+1]}, v{HH[b][i>>4]}, v{LD+4*j+e} row_newbcast:{i&15} {DPPF}")
        self.paced(32, self.DF2, f2_issue, f2_consume)
        A("s_nop 2")
        A("v_lshlrev_b32 v61, 5, v2")
        A(f"s_lshl_b32 s{T0}, s{SU}, 11")
        A(f"s_add_u32 s{T0}, s{T0}, {WS_Y2}")
        for b in range(4):
            A(f"s_add_u32 s{T1}, s{52 + b}, 1")
            A(f"s_and_b32 s{T1}, s{T1}, 0xff")
            A(f"v_mov_b32 v60, s{T1}")
            for e in range(8):
                A(f"v_bfi_b32 v{Y[b][e]}, s{self.SFF}, v60, v{Y[b][e]}")
            A(f"buffer_store_dwordx4 v[{Y[b][0]}:{Y[b][3]}], v61, s[{WSS}:{WSS+3}], s{T0} offen {self.pubflags}")
            A(f"buffer_store_dwordx4 v[{Y[b][4]}:{Y[b][7]}], v61, s[{WSS}:{WSS+3}], s{T0} offen offset:16 {self.pubflags}")
            if b < 3: A(f"s_add_u32 s{T0}, s{T0}, {43 * 2048}")

    def ffn_unit(self, WGS, WUS, WDS, WSS, SU, SB):
        A = self.A
        T0, T1, T2, T3, T4, T5 = self.T
        G = list(range(16, 24)); U = list(range(24, 32))
        LD = 200
        XV = 32
        for e in range(8):
            A(f"v_mov_b32 v{G[e]}, 0"); A(f"v_mov_b32 v{U[e]}, 0")
        A("v_lshrrev_b32 v40, 2, v2")
        A(f"s_movk_i32 s{T0}, 2752")
        A(f"v_mul_lo_u32 v41, v40, s{T0}")
        A("v_and_b32 v42, 3, v2")
        A("v_lshl_add_u32 v41, v42, 4, v41")
        A(f"s_lshl_b32 s{T1}, s{SU}, 6")
        A(f"v_add_u32 v41, s{T1}, v41")
        A("v_lshlrev_b32 v40, 2, v40")
        A(f"s_mov_b32 s{T4}, 0")
        A(f"s_mov_b32 s{T3}, 8")
        def f1_issue(j):
            A(f"buffer_load_dwordx4 v[{LD+8*j}:{LD+8*j+3}], v41, s[{WGS}:{WGS+3}], s{T4} offen {self.fflags}")
            A(f"buffer_load_dwordx4 v[{LD+8*j+4}:{LD+8*j+7}], v41, s[{WUS}:{WUS+3}], s{T4} offen {self.fflags}")
            A(f"s_add_u32 s{T4}, s{T4}, {16*2752}")
        def f1_consume(j):
            for e in range(4):
                A(f"v_dot2c_f32_bf16 v{G[2*e]}, v{XV+j}, v{LD+8*j+e}")
                A(f"v_dot2c_f32_bf16 v{G[2*e+1]}, v{XV+4+j}, v{LD+8*j+e}")
            for e in range(4):
                A(f"v_dot2c_f32_bf16 v{U[2*e]}, v{XV+j}, v{LD+8*j+4+e}")
                A(f"v_dot2c_f32_bf16 v{U[2*e+1]}, v{XV+4+j}, v{LD+8*j+4+e}")
        def f1_pre():
            for j in range(4):
                A(f"ds_read_b32 v{XV+j}, v40 offset:{L_XN + 64*j}")
            A("v_add_u32 v40, 256, v40")
            A("s_waitcnt lgkmcnt(0)")
            for j in range(4):
                A(f"v_lshlrev_b32 v{XV+4+j}, 16, v{XV+j}")
        lp = self.newlab("f1")
        self.lab(lp)
        self.paced(4, self.DF1, f1_issue, f1_consume, per=2, pre=f1_pre)
        A(f"s_sub_u32 s{T3}, s{T3}, 1")
        A(f"s_cmp_lg_u32 s{T3}, 0")
        A(f"s_cbranch_scc1 {lp}")
        A("s_nop 2")
        for e in range(8):
            A(f"v_permlane32_swap_b32 v{G[e]}, v{U[e]}")
        for e in range(8):
            A(f"v_add_f32 v{G[e]}, v{G[e]}, v{U[e]}")
        for e in range(4):
            A(f"v_permlane16_swap_b32 v{G[e]}, v{G[e+4]}")
        for e in range(4):
            A(f"v_add_f32 v{G[e]}, v{G[e]}, v{G[e+4]}")
        A("s_nop 0")
        for e in range(2):
            A(f"v_add_f32_dpp v{G[e]}, v{G[e]}, v{G[e]} row_ror:8 row_mask:0xf bank_mask:0x3")
            A(f"v_add_f32_dpp v{G[e]}, v{G[e+2]}, v{G[e+2]} row_ror:8 row_mask:0xf bank_mask:0xc")
        A("s_nop 1")
        A(f"v_add_f32_dpp v{G[0]}, v{G[0]}, v{G[0]} row_shl:4 row_mask:0xf bank_mask:0x5")
        A(f"v_add_f32_dpp v{G[0]}, v{G[1]}, v{G[1]} row_shr:4 row_mask:0xf bank_mask:0xa")
        A(f"v_mov_b32 v{U[0]}, v{G[0]}")
        A("s_nop 1")
        A(f"v_permlane32_swap_b32 v{G[0]}, v{U[0]}")
        self.round_bf16(G[0], G[0])
        self.round_bf16(U[0], U[0])
        x = G[0]
        A(f"v_mul_f32 v43, v{x}, v{x}")
        A(f"v_mul_f32 v43, v43, v{x}")
        A("v_mul_f32 v43, 0x3d372713, v43")
        A(f"v_add_f32 v43, v{x}, v43")
        A("v_mul_f32 v43, 0xc0135761, v43")
        A("v_exp_f32 v43, v43")
        A("s_nop 0")
        A("v_add_f32 v43, 1.0, v43")
        A("v_rcp_f32 v43, v43")
        A("s_nop 0")
        A(f"v_mul_f32 v43, v{x}, v43")
        self.round_bf16(43, 43)
        A(f"v_mul_f32 v43, v43, v{U[0]}")
        A("v_cvt_pk_bf16_f32 v43, v43, 0")
        A("v_and_b32 v44, 3, v2")
        A("v_lshlrev_b32 v44, 3, v44")
        A("v_bfe_u32 v45, v2, 2, 2")
        A("v_add_u32 v44, v44, v45")
        A("v_bfe_u32 v45, v2, 4, 1")
        A("v_lshl_add_u32 v44, v45, 2, v44")
        A("v_lshlrev_b32 v44, 2, v44")
        A("s_mov_b32 exec_hi, 0")
        A(f"ds_write_b32 v44, v43 offset:{L_HL}")
        A("s_mov_b32 exec_hi, -1")
        A("v_lshlrev_b32 v44, 2, v4")
        A(f"ds_read_b32 v32, v44 offset:{L_HL}")
        A(f"ds_read_b32 v33, v44 offset:{L_HL + 64}")
        for e in range(8):
            A(f"v_mov_b32 v{G[e]}, 0")
        A("s_waitcnt lgkmcnt(0)")
        A("v_lshlrev_b32 v34, 16, v32")
        A("v_lshlrev_b32 v35, 16, v33")
        A("v_lshlrev_b32 v41, 4, v2")
        A(f"s_lshl_b32 s{T4}, s{SU}, 15")
        def f2_issue(i):
            j = i % 8
            A(f"buffer_load_dwordx4 v[{LD+4*j}:{LD+4*j+3}], v41, s[{WDS}:{WDS+3}], s{T4} offen {self.fflags}")
            A(f"s_add_u32 s{T4}, s{T4}, 0x400")
        def f2_consume(i):
            j = i % 8
            for e in range(4):
                A(f"v_dot2c_f32_bf16_dpp v{G[2*e]}, v{32 + (i>>4)}, v{LD+4*j+e} row_newbcast:{i&15} {DPPF}")
                A(f"v_dot2c_f32_bf16_dpp v{G[2*e+1]}, v{34 + (i>>4)}, v{LD+4*j+e} row_newbcast:{i&15} {DPPF}")
        assert self.DF2 <= 7
        self.paced(32, self.DF2, f2_issue, f2_consume)
        A("s_nop 2")
        for e in range(8):
            self.tag(G[e])
        A(f"s_mul_i32 s{T0}, s{SB}, 43")
        A(f"s_add_u32 s{T0}, s{T0}, s{SU}")
        A(f"s_lshl_b32 s{T0}, s{T0}, 11")
        A(f"s_add_u32 s{T0}, s{T0}, {WS_Y2}")
        A("v_lshlrev_b32 v41, 5, v2")
        A(f"buffer_store_dwordx4 v[{G[0]}:{G[3]}], v41, s[{WSS}:{WSS+3}], s{T0} offen {self.pubflags}")
        A(f"buffer_store_dwordx4 v[{G[4]}:{G[7]}], v41, s[{WSS}:{WSS+3}], s{T0} offen offset:16 {self.pubflags}")

    def exchange(self, WSS, SB, SCG):
        A = self.A
        T0, T1, T2, T3, T4, T5 = self.T
        A("v_mov_b32 v10, 0")
        def test_flags():
            A(f"ds_read_b128 v[24:27], v10 offset:{L_FL}")
            A("s_waitcnt lgkmcnt(0)")
            A("v_bitop3_b32 v24, v24, v25, v26 bitop3:0x80")
            A("v_and_b32 v24, v24, v27")
            A("s_nop 0")
            A(f"v_readfirstlane_b32 s{T0}, v24")
            A("s_nop 3")
            A(f"s_cmp_eq_u32 s{T0}, 1")
        self.lds_wait(test_flags)
        A("v_and_b32 v13, 3, v2")
        A("v_lshlrev_b32 v13, 3, v13")
        A(f"ds_read_b64 v[24:25], v13 offset:{L_ML}")
        A("s_waitcnt lgkmcnt(0)")
        A(f"s_mov_b32 s{T1}, 0x3fb8aa3b")
        A(f"v_max_f32_dpp v26, v24, v24 quad_perm:[2,3,0,1] {DPPF}")
        A("s_nop 1")
        A(f"v_max_f32_dpp v26, v26, v26 quad_perm:[1,0,3,2] {DPPF}")
        A("v_sub_f32 v27, v24, v26")
        A(f"v_mul_f32 v27, s{T1}, v27")
        A("v_exp_f32 v27, v27")
        A("s_nop 0")
        A("v_mul_f32 v27, v27, v25")
        A("s_nop 1")
        A(f"v_add_f32_dpp v27, v27, v27 quad_perm:[2,3,0,1] {DPPF}")
        A("s_nop 1")
        A(f"v_add_f32_dpp v27, v27, v27 quad_perm:[1,0,3,2] {DPPF}")
        A("v_mov_b32 v28, v26")
        A("v_mov_b32 v29, v27")
        self.tag(28); self.tag(29)
        A("v_mov_b32 v30, v28")
        A("v_mov_b32 v31, v29")
        A("v_and_b32 v26, 0xffffff00, v26")
        A("v_and_b32 v27, 0xffffff00, v27")
        A(f"s_lshl_b32 s{T2}, s2, 7")
        A(f"s_add_u32 s{T2}, s{T2}, {WS_ML}")
        A("s_mov_b64 exec, 1")
        A(f"buffer_store_dwordx4 v[28:31], v10, s[{WSS}:{WSS+3}], s{T2} offen {self.pubflags}")
        A(f"buffer_store_dwordx4 v[28:31], v10, s[{WSS}:{WSS+3}], s{T2} offen offset:16 {self.pubflags}")
        A("s_mov_b64 exec, -1")
        def test_prog():
            A(f"ds_read_b32 v30, v10 offset:{L_PR}")
            A("s_waitcnt lgkmcnt(0)")
            A(f"v_readfirstlane_b32 s{T0}, v30")
            A("s_nop 3")
            A(f"s_cmp_ge_u32 s{T0}, {16 + self.LG}")
        self.lds_wait(test_prog, sleep=16)
        A("v_lshlrev_b32 v10, 11, v2")
        A(f"s_mul_i32 s{T2}, s{SB}, {43*2048}")
        A(f"s_lshl_b32 s{T3}, s{SCG}, 5")
        A(f"s_add_u32 s{T2}, s{T2}, s{T3}")
        A(f"s_add_u32 s{T2}, s{T2}, {WS_Y2}")
        for e in range(8):
            A(f"v_mov_b32 v{32+e}, 0")
        A("s_mov_b32 exec_hi, 0x7ff")
        self.poll(32, 8, 10, WSS, T2, 16, code=2)
        A("s_nop 1")
        self.reduce8_wave(list(range(32, 40)))
        self.round_bf16(32, 32)
        A("v_mul_f32 v33, 0xbfb8aa3b, v32")
        A("v_exp_f32 v33, v33")
        A("s_nop 0")
        A("v_add_f32 v33, 1.0, v33")
        A("v_rcp_f32 v34, v33")
        A("s_nop 0")
        A("v_mul_f32 v35, v32, v34")
        self.round_bf16(35, 35)
        A("v_lshrrev_b32 v13, 3, v2")
        A("v_lshlrev_b32 v13, 2, v13")
        A(f"ds_write_b32 v13, v35 offset:{L_G}")
        A(f"s_xor_b32 s{T2}, s2, 32")
        A(f"s_lshl_b32 s{T2}, s{T2}, 7")
        A(f"s_add_u32 s{T2}, s{T2}, {WS_ML}")
        A("v_mov_b32 v10, 0")
        self.poll(44, 8, 10, WSS, T2, 16, code=3)
        A("v_mov_b32 v28, v44")
        A("v_mov_b32 v29, v45")
        A("v_max_f32 v30, v26, v28")
        A("v_sub_f32 v31, v26, v30"); A(f"v_mul_f32 v31, s{T1}, v31"); A("v_exp_f32 v31, v31")
        A("v_sub_f32 v40, v28, v30"); A(f"v_mul_f32 v40, s{T1}, v40"); A("v_exp_f32 v40, v40")
        A("v_sub_f32 v41, v24, v30"); A(f"v_mul_f32 v41, s{T1}, v41"); A("v_exp_f32 v41, v41")
        A("v_mul_f32 v31, v31, v27")
        A("v_fmac_f32 v31, v40, v29")
        A("v_rcp_f32 v40, v31")
        A("s_nop 0")
        A("v_mul_f32 v42, v41, v40")
        A("v_fma_f32 v43, -v42, v31, v41")
        A("v_fmac_f32 v42, v43, v40")
        A("v_and_b32 v13, 3, v2")
        A("v_lshlrev_b32 v13, 2, v13")
        A(f"ds_write_b32 v13, v42 offset:{L_SC}")

    def generate(self):
        A = self.A
        self.L.append(HEADER + f"; @launch grid=(256,1,1) block=(512,1,1) lds={self.lds_bytes}")
        self.L.append('.amdgcn_target "amdgcn-amd-amdhsa--gfx950"')
        self.L.append(".text")
        self.L.append(f".globl {KNAME}")
        self.L.append(".p2align 8")
        self.L.append(f".type {KNAME},@function")
        self.lab(KNAME)
        A("s_cmp_ge_u32 s2, 0x100")
        A("s_cbranch_scc1 L_exit")
        if self.fastentry:
            A("s_load_dwordx2 s[12:13], s[0:1], 8")
            A("s_load_dwordx2 s[16:17], s[0:1], 16")
        else:
            A("s_load_dwordx4 s[8:11], s[0:1], 8")
        A("v_lshrrev_b32 v1, 6, v0")
        A("v_and_b32 v2, 63, v0")
        self.stamp(0)
        A("v_readfirstlane_b32 s3, v1")
        A("s_nop 1")
        A("s_cmp_ge_u32 s3, 4")
        A("s_cbranch_scc1 L_helper")
        self.streamer()
        self.helper()
        self.lab("L_exit")
        A("s_endpgm")
        self.lab("L_code_end")
        body = [ln for ln in self.L if ln.startswith("  ") and not ln.strip().startswith(";")]
        kb = (len(body) * 8 + 1023) // 1024 + 1
        out = []
        for ln in self.L:
            if "PREFETCH_PLACEHOLDER" in ln:
                for i in range((kb + 31) // 32):
                    out.append(f"  v_min_u32 v13, L_code_end-{KNAME}-16, v10")
                    out.append("  global_load_dwordx4 v[196:199], v13, s[90:91]")
                    out.append("  v_add_u32 v10, 0x8000, v10")
            else:
                out.append(ln)
        self.L = out
        self.L.append('.section .rodata,"a"')
        self.L.append(".p2align 6")
        self.L.append(f".amdhsa_kernel {KNAME}")
        self.L.append("  .amdhsa_next_free_vgpr 240")
        self.L.append("  .amdhsa_next_free_sgpr 96")
        self.L.append("  .amdhsa_accum_offset 240")
        self.L.append("  .amdhsa_group_segment_fixed_size 0")
        self.L.append("  .amdhsa_kernarg_size 96")
        self.L.append("  .amdhsa_user_sgpr_count 2")
        self.L.append("  .amdhsa_user_sgpr_kernarg_segment_ptr 1")
        self.L.append("  .amdhsa_system_sgpr_workgroup_id_x 1")
        self.L.append("  .amdhsa_float_denorm_mode_32 3")
        self.L.append(".end_amdhsa_kernel")
        return "\n".join(self.L) + "\n"


if __name__ == "__main__":
    os.makedirs("out", exist_ok=True)
    names = []
    def add(name, **kw):
        txt = Gen(**kw).generate()
        build(txt, "out/" + name, KNAME)
        names.append("out/" + name)
    if len(sys.argv) > 1:
        exec(open(sys.argv[1]).read())
    else:
        add("v2")
    open("out/mlist.txt", "w").write("\n".join(names) + "\n")
    print(names)
```

```python
import sys, os
from common import build

KNAME = "recurrent_scan__mha_block_cached__geglu_ffn__decode_kernel"

HEADER = """; Kernarg layout for this problem (96 bytes, ptrs only, base s[0:1]):
;   offset  88: d_ws      1073741824 bytes workspace
;
;    out = x + s * silu(ffn).
;  * Values handed between workgroups through d_ws carry an 8-bit tag in their low mantissa bits.  The tag is one
;    more than a per-batch word found in d_ws on entry (it only tells this launch's hand-offs from older ones) and is
"""

WS_Y   = 0x00000
WS_ML  = 0x80000
WS_Y2  = 0x90000
WS_N   = 0xF0000
WS_DSEL = 0xF8000
WS_TT  = 0x100000
WS_SZ  = 0x140000
WS_TS  = 0x200000
L_SP  = 0x0000
L_QP  = 0x4000
L_OP  = 0x4800
L_XN  = 0x5000
L_ML  = 0x5800
L_FL  = 0x5820
L_PR  = 0x5830
L_SC  = 0x5840
L_G   = 0x5860
L_HL  = 0x5880
L_MK  = 0x5900
L_TS3 = 0x5C00
L_X4  = 0x6000
L_H4  = 0x5A00
L_KB  = 0x8000
DPPF = "row_mask:0xf bank_mask:0xf"


class Gen:
    def __init__(self, D=5, DF=5, B=48, BL=0, BT=16, DQ=3, DO=2, DF1=1, DF2=2, LG=12, ffn_wave=3,
                 kvflags="nt", wflags="nt", woflags="nt", fflags="nt", pubflags="sc1",
                 ts=False, prefetch_code=True, prio=True, spin_limit=1 << 16, fsleep=1,
                 do_ffn=True, do_wo=True, do_exch=True, do_tail=True, do_final=True, helper_exit=False,
                 skip_wq=False, DH=None, DL=None, mask=0, mask2=0, mask_src='const', tlbwarm=0, ts2=False, ctl=False, cps=((10,11,12,3),(14,17,18,4),(21,22,23,4),(26,27,28,3)), tau=40, bias=0, ctl_wave=2, csleep=8, nbud=8, ffn4=True, fpoll='simple', fs=(24, 32, 8, 8), nsets=2, stag=4, mark=False, ncp_early=0, ts3=False, ytr=False, mstep=None, fastentry=True, outflags='', pollflags='sc1', ypubflags=None, repf=(), vtouch=(), clear=False):
        self.__dict__.update(locals())
        del self.__dict__["self"]
        self.L = []
        self.uid = 0
        self.lds_bytes = L_KB + 4 * BL * 1024

    def A(self, s):
        self.L.append("  " + s)
    def lab(self, s):
        self.L.append(s + ":")
    def newlab(self, base):
        self.uid += 1
        return f"L_{base}_{self.uid}"

    def stamp(self, k):
        if self.ts:
            self.A(f"s_memrealtime s[{64+2*k}:{65+2*k}]")

    def write_stamps(self, n, extra=()):
        if not self.ts:
            return
        A = self.A
        A("s_load_dwordx2 s[40:41], s[0:1], 88")
        A("s_waitcnt lgkmcnt(0)")
        A(f"s_add_u32 s40, s40, {WS_TS}")
        A("s_addc_u32 s41, s41, 0")
        A("s_mov_b32 s42, 0x100000")
        A("s_mov_b32 s43, 0x20000")
        A("s_lshl_b32 s44, s2, 3")
        A("s_add_u32 s44, s44, s3")
        A("s_lshl_b32 s44, s44, 7")
        A("s_mov_b64 exec, 1")
        A("v_mov_b32 v1, 0")
        for k in range(n):
            A(f"v_mov_b32 v0, s{64+2*k}")
            A(f"buffer_store_dword v0, v1, s[40:43], s44 offen offset:{4*k}")
            A("s_nop 1")
        for k, r in enumerate(extra):
            A(f"v_mov_b32 v0, s{r}")
            A(f"buffer_store_dword v0, v1, s[40:43], s44 offen offset:{4*(16+k)}")
            A("s_nop 1")
        A("s_waitcnt vmcnt(0)")
        A("s_mov_b64 exec, -1")

    def srd(self, dst, src, size):
        A = self.A
        A(f"s_mov_b32 s{dst}, s{src}")
        A(f"s_mov_b32 s{dst+1}, s{src+1}")
        A(f"s_mov_b32 s{dst+2}, {size}")
        A(f"s_mov_b32 s{dst+3}, 0x20000")

    def paced(self, n, d, issue, consume, per=1, pre=None):
        d = min(d, n)
        for j in range(d):
            issue(j)
        if pre: pre()
        for j in range(d, n + d):
            k = j - d
            left = min(d - 1, n - 1 - k)
            self.A(f"s_waitcnt vmcnt({left * per})")
            if j < n: issue(j)
            consume(k)

    def reduce8_rows(self, a):
        A = self.A
        for e in range(4):
            A(f"v_permlane32_swap_b32 v{a[e]}, v{a[e+4]}")
        for e in range(4):
            A(f"v_add_f32 v{a[e]}, v{a[e]}, v{a[e+4]}")
        A("s_nop 0")
        A(f"v_permlane16_swap_b32 v{a[0]}, v{a[2]}")
        A(f"v_permlane16_swap_b32 v{a[1]}, v{a[3]}")
        A(f"v_add_f32 v{a[0]}, v{a[0]}, v{a[2]}")
        A(f"v_add_f32 v{a[1]}, v{a[1]}, v{a[3]}")

    def reduce8_wave(self, a):
        A = self.A
        self.reduce8_rows(a)
        A("s_nop 1")
        A(f"v_add_f32_dpp v{a[0]}, v{a[0]}, v{a[0]} row_ror:8 row_mask:0xf bank_mask:0x3")
        A(f"v_add_f32_dpp v{a[0]}, v{a[1]}, v{a[1]} row_ror:8 row_mask:0xf bank_mask:0xc")
        A("s_nop 1")
        A(f"v_add_f32_dpp v{a[0]}, v{a[0]}, v{a[0]} row_half_mirror {DPPF}")
        A("s_nop 1")
        A(f"v_add_f32_dpp v{a[0]}, v{a[0]}, v{a[0]} quad_perm:[2,3,0,1] {DPPF}")
        A("s_nop 1")
        A(f"v_add_f32_dpp v{a[0]}, v{a[0]}, v{a[0]} quad_perm:[1,0,3,2] {DPPF}")

    def allreduce(self, op, x, t):
        A = self.A
        for m in ("row_ror:8", "row_ror:4", "row_ror:2", "row_ror:1"):
            A("s_nop 1")
            A(f"{op}_dpp v{x}, v{x}, v{x} {m} {DPPF}")
        A(f"v_mov_b32 v{t}, v{x}")
        A("s_nop 1")
        A(f"v_permlane16_swap_b32 v{x}, v{t}")
        A(f"{op} v{x}, v{x}, v{t}")
        A(f"v_mov_b32 v{t}, v{x}")
        A("s_nop 1")
        A(f"v_permlane32_swap_b32 v{x}, v{t}")
        A(f"{op} v{x}, v{x}, v{t}")

    def round_bf16(self, dst, src):
        self.A(f"v_cvt_pk_bf16_f32 v{dst}, v{src}, v{src}")
        self.A(f"v_and_b32 v{dst}, 0xffff0000, v{dst}")

    def streamer(self):
        A, D, B, BL = self.A, self.D, self.B, self.BL
        VOFF, VLDS, VM, VL, VT = 3, 4, 5, 6, 7
        Q = [8, 9, 10, 11]
        T = list(range(12, 28))
        ACC = list(range(28, 36))
        PL, PH, PLN = 36, 37, 38
        VPRA, VPRV, VKB = 44, 45, 46
        R0, E0 = 48, 112
        assert 16 <= B <= 48 and B % 16 == 0 and BL in (0, 16, 32)
        KS, VS = 12, 16
        SBASE, SOFF, SCNT = 20, 21, 22
        M1, M2, SSC, SLG = 24, 26, 28, 29
        NF = B + BL

        self.lab("L_stream")
        A("s_and_b32 s23, s2, 7")
        A("s_bfe_u32 s30, s2, 0x20003")
        A("s_lshl_b32 s30, s30, 3")
        A("s_add_u32 s23, s23, s30")
        A("s_lshr_b32 s30, s2, 6")
        A("s_lshl_b32 s30, s30, 5")
        A("s_add_u32 s23, s23, s30")
        A("s_lshl_b32 s23, s23, 1")
        A("s_bfe_u32 s30, s2, 0x10005")
        A("s_add_u32 s23, s23, s30")
        A(f"s_lshl_b32 s{SBASE}, s23, 20")
        A("s_lshl_b32 s30, s3, 10")
        A(f"v_lshlrev_b32 v{VOFF}, 4, v2")
        A(f"v_add_u32 v{VOFF}, s30, v{VOFF}")
        A(f"s_mov_b32 s{SOFF}, s{SBASE}")
        if BL:
            A(f"s_mul_i32 s31, s3, {BL*1024}")
            A(f"s_add_u32 s31, s31, {L_KB}")
        if self.fastentry:
            A(f"s_mov_b32 s{KS+2}, 0x10000000"); A(f"s_mov_b32 s{KS+3}, 0x20000")
        A("s_waitcnt lgkmcnt(0)")
        if self.ts2: A("s_memrealtime s[80:81]")
        if not self.fastentry: self.srd(KS, 8, 0x10000000)

        issued, consumed = [], set()
        state = {"next": 0, "done": -1}
        def is_lds(n): return B <= n < NF
        def slot(n):
            if n < 16: return R0 + 4 * n
            if n < B: return E0 + 4 * (n - 16)
            return R0 + 4 * (n % 16)
        def slot_free(n):
            if is_lds(n): return True
            s = slot(n)
            return not any(m < n and not is_lds(m) and slot(m) == s and m not in consumed for m in issued)
        def issue(n):
            assert n == state["next"]
            if n == 256:
                A(f"s_mov_b32 s{SOFF}, s{SBASE}")
            srd = KS if n < 256 else VS
            if is_lds(n):
                A(f"s_add_u32 m0, s31, {(n - B) * 1024}")
                A("s_nop 0")
                A(f"buffer_load_dwordx4 v{VOFF}, s[{srd}:{srd+3}], s{SOFF} offen {self.kvflags} lds")
            else:
                s = slot(n)
                A(f"buffer_load_dwordx4 v[{s}:{s+3}], v{VOFF}, s[{srd}:{srd+3}], s{SOFF} offen {self.kvflags}")
            A(f"s_add_u32 s{SOFF}, s{SOFF}, 0x1000")
            issued.append(n); state["next"] = n + 1
        def wait_for(n):
            if n <= state["done"]:
                return
            cnt = len(issued) - 1 - issued.index(n)
            assert cnt <= 63
            A(f"s_waitcnt vmcnt({cnt})")
            state["done"] = n
        def issue_upto(lim):
            while state["next"] <= lim and state["next"] < 512 and slot_free(state["next"]):
                issue(state["next"])

        for j in range(NF):
            if j >= self.DF:
                wait_for(j - self.DF)
            issue(j)
            if self.ts2 and j == self.DF - 1: A("s_memrealtime s[82:83]")
            if self.ts2 and j == self.DF: A("s_memrealtime s[84:85]")
            j0 = self.DF - 1 if self.fastentry else 0
            if j == j0:
                if self.fastentry:
                    A(f"s_mov_b32 s{VS+2}, 0x10000000"); A(f"s_mov_b32 s{VS+3}, 0x20000")
                else:
                    self.srd(VS, 10, 0x10000000)
            if j == (j0 if self.fastentry else 1):
                A(f"s_mov_b32 s{M1}, 0xaaaaaaaa"); A(f"s_mov_b32 s{M1+1}, 0xaaaaaaaa")
                A(f"s_mov_b32 s{M2}, 0xcccccccc"); A(f"s_mov_b32 s{M2+1}, 0xcccccccc")
                A(f"s_mov_b32 s{SSC}, 0x3db504f3"); A(f"s_mov_b32 s{SLG}, 0x3fb8aa3b")
            if j == (j0 if self.fastentry else 2):
                A("s_lshl_b32 s30, s3, 12")
                A(f"v_lshlrev_b32 v{VLDS}, 2, v2")
                A(f"v_add_u32 v{VLDS}, s30, v{VLDS}")
                A(f"v_mov_b32 v{VM}, 0xff800000")
                A("v_and_b32 v1, 15, v2")
                A("v_lshlrev_b32 v1, 5, v1")
                A("s_lshl_b32 s30, s3, 2")
                A(f"v_mov_b32 v{VPRA}, s30")
                if BL:
                    A(f"v_lshlrev_b32 v{VKB}, 4, v2")
                    A(f"v_add_u32 v{VKB}, s31, v{VKB}")
                if self.prio: A("s_setprio 2")
        if self.DH is not None and not self.ctl:
            if self.mask_src == 'ws':
                A("s_load_dwordx2 s[34:35], s[0:1], 88")
                A("s_waitcnt lgkmcnt(0)")
                A("s_lshl_b32 s32, s2, 2")
                A(f"s_add_u32 s32, s32, {WS_DSEL}")
                A("s_load_dword s33, s[34:35], s32")
                A("s_waitcnt lgkmcnt(0)")
            elif self.mask_src == 'ffn':
                A("s_bfe_u32 s32, s2, 0x30003")
                A("s_and_b32 s33, s2, 7")
                A("s_mul_i32 s33, s33, 6")
                A("s_add_u32 s33, s33, s32")
                A("s_cmp_ge_u32 s32, 6")
                A("s_cselect_b32 s33, 63, s33")
                if self.ffn4:
                    A("s_and_b32 s32, s32, 3")
                    A("s_lshr_b32 s35, s2, 6")
                    A("s_cmp_lg_u32 s32, s35")
                    A("s_cselect_b32 s33, 63, s33")
                A("s_cmp_lt_u32 s33, 43")
                A(f"s_cselect_b32 s33, {self.mask}, {self.mask2}")
            else:
                A(f"s_mov_b32 s33, {self.mask}")
        self.stamp(1)
        A("s_barrier")
        self.stamp(2)
        for hw in range(4):
            A(f"ds_read_b128 v[{12+8*hw}:{15+8*hw}], v1 offset:{L_QP + hw*512}")
            A(f"ds_read_b128 v[{16+8*hw}:{19+8*hw}], v1 offset:{L_QP + hw*512 + 16}")
        A("s_waitcnt lgkmcnt(4)")
        for e in range(8):
            A(f"v_add_f32 v{12+e}, v{12+e}, v{20+e}")
        A("s_waitcnt lgkmcnt(0)")
        for e in range(8):
            A(f"v_add_f32 v{28+e}, v{28+e}, v{36+e}")
        for e in range(8):
            A(f"v_add_f32 v{12+e}, v{12+e}, v{28+e}")
        for e in range(4):
            A(f"v_cvt_pk_bf16_f32 v{Q[e]}, v{12+2*e}, v{13+2*e}")

        DH = self.DH
        SMASK = 33
        sw = DH is not None
        kk = (DH - D) if sw else 0

        def k_dots(i, s):
            A(f"v_dot2_f32_bf16 v{T[i]}, v{s}, v{Q[0]}, 0")
            for e in range(1, 4):
                A(f"v_dot2_f32_bf16 v{T[i]}, v{s+e}, v{Q[e]}, v{T[i]}")
        def v_dots(i, s):
            for e in range(4):
                A(f"v_dot2c_f32_bf16_dpp v{ACC[2*e]}, v{PL}, v{s+e} row_newbcast:{i} {DPPF}")
                A(f"v_dot2c_f32_bf16_dpp v{ACC[2*e+1]}, v{PH}, v{s+e} row_newbcast:{i} {DPPF}")
        def k_end():
            A("s_nop 0")
            A(f"v_add_f32_dpp v{T[7]}, v{T[7]}, v{T[7]} row_ror:8 row_mask:0xf bank_mask:0x3")
            A(f"v_add_f32_dpp v{T[7]}, v{T[15]}, v{T[15]} row_ror:8 row_mask:0xf bank_mask:0xc")
            for k in range(4):
                A(f"v_add_f32_dpp v{T[k]}, v{T[k]}, v{T[k]} row_half_mirror row_mask:0xf bank_mask:0x5")
                A(f"v_add_f32_dpp v{T[k]}, v{T[k+4]}, v{T[k+4]} row_half_mirror row_mask:0xf bank_mask:0xa")
            A("s_nop 0")
            for k in range(4):
                A(f"v_add_f32_dpp v{T[k]}, v{T[k]}, v{T[k]} quad_perm:[2,3,0,1] {DPPF}")
            A(f"v_cndmask_b32_e64 v{T[0]}, v{T[0]}, v{T[2]}, s[{M2}:{M2+1}]")
            A(f"v_cndmask_b32_e64 v{T[1]}, v{T[1]}, v{T[3]}, s[{M2}:{M2+1}]")
            A("s_nop 0")
            A(f"v_add_f32_dpp v{T[0]}, v{T[0]}, v{T[0]} quad_perm:[1,0,3,2] {DPPF}")
            A(f"v_add_f32_dpp v{T[1]}, v{T[1]}, v{T[1]} quad_perm:[1,0,3,2] {DPPF}")
            A(f"v_cndmask_b32_e64 v{T[0]}, v{T[0]}, v{T[1]}, s[{M1}:{M1+1}]")
            self.round_bf16(T[0], T[0])
            A(f"v_mul_f32 v{T[0]}, s{SSC}, v{T[0]}")
            self.round_bf16(T[0], T[0])
            A(f"v_max_f32 v{VM}, v{VM}, v{T[0]}")
            A(f"ds_write_b32 v{VLDS}, v{T[0]} offset:{L_SP}")
            A(f"v_add_u32 v{VLDS}, 0x100, v{VLDS}")
        def k_extra(i):
            if i >= 9:
                k = i - 9
                A(f"v_add_f32_dpp v{T[k]}, v{T[k]}, v{T[k]} row_ror:8 row_mask:0xf bank_mask:0x3")
                A(f"v_add_f32_dpp v{T[k]}, v{T[k+8]}, v{T[k+8]} row_ror:8 row_mask:0xf bank_mask:0xc")
        VMK = 47
        ctl = self.ctl
        def v_pre(last):
            if not last:
                A(f"v_add_u32 v{VLDS}, 0x100, v{VLDS}")
                A(f"ds_read_b32 v{PLN}, v{VLDS} offset:{L_SP}")
        def mask_read():
            if ctl: A(f"ds_read_b32 v{VMK}, v{VPRA} offset:{L_MK}")
        def head(kind):
            A(f"s_sub_u32 s34, {15 + (16 if kind == 'v' else 0)}, s{SCNT}")
            if self.ts3:
                A("s_memrealtime s[36:37]")
                A("s_lshl_b32 s35, s34, 2")
                A(f"v_lshlrev_b32 v39, 5, v{VPRA}")
                A("v_add_u32 v39, s35, v39")
                A("s_waitcnt lgkmcnt(0)")
                A("v_mov_b32 v40, s36")
                A(f"ds_write_b32 v39, v40 offset:{L_TS3}")
            if ctl:
                if kind == "k": A("s_waitcnt lgkmcnt(1)")
                A(f"v_readfirstlane_b32 s{SMASK}, v{VMK}")
            if kind == "v": v_pre(False)
            if self.mstep is None: mask_read()
            if kind == "v" or ctl:
                A(f"v_mov_b32 v{VPRV}, s34")
                A(f"ds_write_b32 v{VPRA}, v{VPRV} offset:{L_PR}")
        def v_end(last):
            if not last:
                A("s_waitcnt lgkmcnt(0)")
                A(f"v_mov_b32 v{PL}, v{PLN}")
                A(f"v_lshlrev_b32 v{PH}, 16, v{PLN}")

        def steps(kind, g, d, first=0, labels=None, in_loop=False):
            base = 16 * g + (256 if kind == "v" else 0)
            lds_group = kind == "k" and is_lds(base)
            if lds_group:
                wait_for(base + 15)
                for i in range(16):
                    s = E0 + 4 * i
                    A(f"ds_read_b128 v[{s}:{s+3}], v{VKB} offset:{(base - B + i) * 1024}")
            for i in range(first, 16):
                n = base + i
                if labels and i in labels: self.lab(labels[i])
                if not lds_group: wait_for(n)
                lim = n + d
                if n < NF: lim = max(lim, NF + d - 1)
                issue_upto(lim)
                if lds_group:
                    A(f"s_waitcnt lgkmcnt({15 - i})")
                    s = E0 + 4 * i
                else:
                    s = slot(n)
                if in_loop and self.mstep is not None and i == self.mstep: mask_read()
                (k_dots if kind == "k" else v_dots)(i, s)
                consumed.add(n)
                if kind == "k": k_extra(i)

        def snapshot(): return (list(issued), set(consumed), dict(state))
        def restore(sn):
            issued[:] = sn[0]; consumed.clear(); consumed.update(sn[1]); state.update(sn[2])
        def forward(kind, g_from, g_to, d):
            off = 256 if kind == "v" else 0
            for n in range(state["next"], off + 16 * g_to + d): issued.append(n)
            for n in range(off + 16 * g_from, off + 16 * g_to): consumed.add(n)
            state["next"] = off + 16 * g_to + d
            state["done"] = off + 16 * g_to - 1

        def sel_test(kind):
            A(f"s_bitcmp1_b32 s{SMASK}, s34")

        def phase_loop(kind, g0, sfx):
            pre = lambda: head(kind)
            end = (lambda: v_end(False)) if kind == "v" else k_end
            dots = k_dots if kind == "k" else v_dots
            off = 256 if kind == "v" else 0
            assert state["next"] == off + 16 * g0 + D, (kind, state["next"])
            A(f"s_mov_b32 s{SCNT}, {15 - g0}")
            Llo, Lhi, Llo1, Lhib = f"L_{kind}lo{sfx}", f"L_{kind}hi{sfx}", f"L_{kind}lo_k{sfx}", f"L_{kind}hib{sfx}"
            Lx, Lup, Ldn, Lxh = f"L_{kind}x{sfx}", f"L_{kind}up{sfx}", f"L_{kind}dn{sfx}", f"L_{kind}xh{sfx}"
            sn0 = snapshot()
            self.lab(Llo)
            pre()
            if sw:
                sel_test(kind)
                A(f"s_cbranch_scc1 {Lup}")
            steps(kind, g0, D, labels={kk: Llo1} if sw else None, in_loop=True)
            end()
            A(f"s_sub_u32 s{SCNT}, s{SCNT}, 1")
            A(f"s_cmp_lg_u32 s{SCNT}, 0")
            A(f"s_cbranch_scc1 {Llo}")
            if sw:
                A(f"s_branch {Lx}")
                restore(sn0)
                self.lab(Lup)
                issue_upto(off + 16 * g0 + DH - 1)
                snh = snapshot()
                A(f"s_branch {Lhib}")
                self.lab(Lhi)
                pre()
                sel_test(kind)
                A(f"s_cbranch_scc0 {Ldn}")
                self.lab(Lhib)
                steps(kind, g0, DH, in_loop=True)
                end()
                A(f"s_sub_u32 s{SCNT}, s{SCNT}, 1")
                A(f"s_cmp_lg_u32 s{SCNT}, 0")
                A(f"s_cbranch_scc1 {Lhi}")
                A(f"s_branch {Lxh}")
                restore(snh)
                self.lab(Ldn)
                for i in range(kk):
                    n = off + 16 * g0 + i
                    wait_for(n); dots(i, slot(n)); consumed.add(n)
                A(f"s_branch {Llo1}")
                restore(snh)
                self.lab(Lxh)
                dfin = (self.DL or D) if kind == "v" else D
                for i in range(kk):
                    n = off + 16 * g0 + i
                    wait_for(n)
                    issue_upto(min(n + dfin, off + 16 * g0 + 15) if kind == "v" else -1)
                    dots(i, slot(n)); consumed.add(n)
                A(f"s_branch L_{kind}15_k{sfx}")
                self.lab(Lx)
            restore(sn0)
            forward(kind, g0, 15, D)

        npeel = max(2, NF // 16)
        for g in range(npeel):
            if g == npeel - 1: mask_read()
            steps("k", g, D); k_end()
        self.stamp(3)
        phase_loop("k", npeel, "")
        steps("k", 15, D, labels={kk: "L_k15_k"} if sw else None); k_end()
        self.stamp(4)
        issue_upto(256 + self.BT - 1)
        A(f"v_add_u32 v{VLDS}, 0xfffff000, v{VLDS}")
        for g in range(16):
            A(f"ds_read_b32 v{T[g]}, v{VLDS} offset:{L_SP + 256*g}")
        self.allreduce("v_max_f32", VM, VT)
        A(f"v_mov_b32 v{VL}, 0")
        for g in range(16):
            A(f"s_waitcnt lgkmcnt({15 - g})")
            A(f"v_sub_f32 v{T[g]}, v{T[g]}, v{VM}")
            A(f"v_mul_f32 v{T[g]}, s{SLG}, v{T[g]}")
            A(f"v_exp_f32 v{T[g]}, v{T[g]}")
            if g > 0:
                A(f"v_add_f32 v{VL}, v{VL}, v{T[g-1]}")
                A(f"v_cvt_pk_bf16_f32 v{T[g-1]}, v{T[g-1]}, 0")
        A("s_nop 0")
        A(f"v_add_f32 v{VL}, v{VL}, v{T[15]}")
        A(f"v_cvt_pk_bf16_f32 v{T[15]}, v{T[15]}, 0")
        for g in range(1, 16):
            A(f"ds_write_b32 v{VLDS}, v{T[g]} offset:{L_SP + 256*g}")
        A(f"v_mov_b32 v{PL}, v{T[0]}")
        A(f"v_lshlrev_b32 v{PH}, 16, v{T[0]}")
        self.allreduce("v_add_f32", VL, VT)
        A(f"v_lshlrev_b32 v1, 1, v{VPRA}")
        A(f"v_mov_b32 v40, v{VM}")
        A(f"v_mov_b32 v41, v{VL}")
        A("v_mov_b32 v42, 1")
        A("s_mov_b64 exec, 1")
        A(f"ds_write_b64 v1, v[40:41] offset:{L_ML}")
        A(f"ds_write_b32 v{VPRA}, v42 offset:{L_FL}")
        A("s_mov_b64 exec, -1")
        for e in range(8):
            A(f"v_mov_b32 v{ACC[e]}, 0")
        self.stamp(5)
        A("s_nop 1")
        v_pre(False); mask_read(); steps("v", 0, D); v_end(False)
        phase_loop("v", 1, "")
        DL = self.DL if self.DL else D
        steps("v", 15, DL, labels={kk: "L_v15_k"} if sw else None)
        self.stamp(6)
        A("v_lshrrev_b32 v1, 4, v2")
        A("v_and_b32 v7, 15, v2")
        A("v_lshlrev_b32 v1, 3, v1")
        A("v_lshl_add_u32 v1, v7, 5, v1")
        A("s_lshl_b32 s30, s3, 9")
        A("v_add_u32 v1, s30, v1")
        self.reduce8_rows(ACC)
        A(f"ds_write_b64 v1, v[{ACC[0]}:{ACC[1]}] offset:{L_OP}")
        A("s_waitcnt lgkmcnt(0)")
        A("s_barrier")
        self.stamp(7)
        if self.ts3:
            A(f"v_lshlrev_b32 v39, 5, v{VPRA}")
            A("v_lshl_add_u32 v39, v2, 2, v39")
            A(f"ds_read_b32 v40, v39 offset:{L_TS3}")
            A("s_load_dwordx2 s[40:41], s[0:1], 88")
            A("s_waitcnt lgkmcnt(0)")
            A(f"s_add_u32 s40, s40, {WS_TS + 0x40000}")
            A("s_addc_u32 s41, s41, 0")
            A("s_mov_b32 s42, 0x100000")
            A("s_mov_b32 s43, 0x20000")
            A("s_lshl_b32 s44, s2, 2")
            A("s_add_u32 s44, s44, s3")
            A("s_lshl_b32 s44, s44, 7")
            A("v_lshlrev_b32 v41, 2, v2")
            A("s_mov_b32 exec_hi, 0")
            A("buffer_store_dword v40, v41, s[40:43], s44 offen")
            A("s_mov_b32 exec_hi, -1")
            A("s_waitcnt vmcnt(0)")
        self.write_stamps(11 if self.ts2 else 8)
        A("s_endpgm")

    def tag(self, reg):
        self.A(f"v_bfi_b32 v{reg}, s{self.SFF}, v12, v{reg}")

    def timeout_mark(self, code):
        if not self.mark: return
        A = self.A
        l = self.newlab("nomark")
        A("s_cmp_eq_u32 s60, -1")
        A(f"s_cbranch_scc0 {l}")
        A("s_load_dwordx2 s[90:91], s[0:1], 80")
        A("s_waitcnt lgkmcnt(0)")
        A(f"v_mov_b32 v15, {4 * code}")
        A("v_mov_b32 v13, 0xdead")
        A("global_store_dword v15, v13, s[90:91]")
        self.lab(l)

    def poll(self, dst, n, voff, srd, soff, sleep, code=1):
        A = self.A
        lp = self.newlab("poll"); dn = self.newlab("polldone")
        A(f"s_mov_b32 s60, {self.spin_limit}")
        self.lab(lp)
        if n == 8:
            A(f"buffer_load_dwordx4 v[{dst}:{dst+3}], v{voff}, s[{srd}:{srd+3}], s{soff} offen {self.pollflags}")
            A(f"buffer_load_dwordx4 v[{dst+4}:{dst+7}], v{voff}, s[{srd}:{srd+3}], s{soff} offen offset:16 {self.pollflags}")
            A("s_waitcnt vmcnt(0)")
            A(f"v_bitop3_b32 v15, v{dst}, v{dst+1}, v{dst+2} bitop3:0x80")
            A(f"v_or3_b32 v13, v{dst}, v{dst+1}, v{dst+2}")
            A(f"v_bitop3_b32 v15, v15, v{dst+3}, v{dst+4} bitop3:0x80")
            A(f"v_or3_b32 v13, v13, v{dst+3}, v{dst+4}")
            A(f"v_bitop3_b32 v15, v15, v{dst+5}, v{dst+6} bitop3:0x80")
            A(f"v_or3_b32 v13, v13, v{dst+5}, v{dst+6}")
            A(f"v_and_b32 v15, v15, v{dst+7}")
            A(f"v_or_b32 v13, v13, v{dst+7}")
        else:
            assert n == 2
            A(f"buffer_load_dwordx2 v[{dst}:{dst+1}], v{voff}, s[{srd}:{srd+3}], s{soff} offen sc1")
            A("s_waitcnt vmcnt(0)")
            A(f"v_and_b32 v15, v{dst}, v{dst+1}")
            A(f"v_or_b32 v13, v{dst}, v{dst+1}")
        A("v_bitop3_b32 v15, v15, v13, v12 bitop3:0x7e")
        A("v_and_b32 v15, 0xff, v15")
        A("v_cmp_ne_u32 vcc, 0, v15")
        A("s_sub_u32 s60, s60, 1")
        A(f"s_cbranch_scc1 {dn}")
        A("s_and_b64 exec, exec, vcc")
        A(f"s_cbranch_scc0 {dn}")
        A(f"s_sleep {sleep}")
        A(f"s_branch {lp}")
        self.lab(dn)
        A("s_mov_b64 exec, -1")
        self.timeout_mark(code)
        for e in range(n):
            A(f"v_and_b32 v{dst+e}, 0xffffff00, v{dst+e}")

    def poll_final(self, dst, voff, srd, soff):
        A = self.A
        T0, T1, T2, T3, T4, T5 = self.T
        hi_cnt, hi_sleep, mid_cnt, mid_sleep = self.fs
        PEND, OKM = 92, 94
        NS = self.nsets
        sets = [40 + 8 * k for k in range(NS)]
        def issue(r):
            A(f"buffer_load_dwordx4 v[{r}:{r+3}], v{voff}, s[{srd}:{srd+3}], s{soff} offen sc1")
            A(f"buffer_load_dwordx4 v[{r+4}:{r+7}], v{voff}, s[{srd}:{srd+3}], s{soff} offen offset:16 sc1")
        def check(r, done):
            A(f"v_bitop3_b32 v15, v{r}, v{r+1}, v{r+2} bitop3:0x80")
            A(f"v_or3_b32 v13, v{r}, v{r+1}, v{r+2}")
            A(f"v_bitop3_b32 v15, v15, v{r+3}, v{r+4} bitop3:0x80")
            A(f"v_or3_b32 v13, v13, v{r+3}, v{r+4}")
            A(f"v_bitop3_b32 v15, v15, v{r+5}, v{r+6} bitop3:0x80")
            A(f"v_or3_b32 v13, v13, v{r+5}, v{r+6}")
            A(f"v_and_b32 v15, v15, v{r+7}")
            A(f"v_or_b32 v13, v13, v{r+7}")
            A("v_bitop3_b32 v15, v15, v13, v12 bitop3:0x7e")
            A("v_and_b32 v15, 0xff, v15")
            A("v_cmp_ne_u32 vcc, 0, v15")
            A("s_nop 1")
            A(f"s_andn2_b64 s[{OKM}:{OKM+1}], exec, vcc")
            A(f"s_and_b64 s[{PEND}:{PEND+1}], exec, vcc")
            A(f"s_mov_b64 exec, s[{OKM}:{OKM+1}]")
            lsk = self.newlab("nomove")
            A(f"s_cbranch_execz {lsk}")
            for e in range(8):
                A(f"v_and_b32 v{dst+e}, 0xffffff00, v{r+e}")
            self.lab(lsk)
            A(f"s_mov_b64 exec, s[{PEND}:{PEND+1}]")
            A(f"s_cbranch_execz {done}")
        slow = self.newlab("fslow"); fast = self.newlab("ffast"); done = self.newlab("fdone"); floop = self.newlab("floop")
        l1 = self.newlab("fs1"); l2 = self.newlab("fs2")
        A(f"s_mov_b32 s60, {self.spin_limit}")
        self.lab(slow)
        issue(sets[0])
        A("s_waitcnt vmcnt(0)")
        check(sets[0], done)
        A("s_sub_u32 s60, s60, 1")
        A(f"s_cbranch_scc1 {done}")
        A(f"s_bcnt1_i32_b64 s{T2}, exec")
        A(f"s_cmp_lt_u32 s{T2}, {mid_cnt}")
        A(f"s_cbranch_scc1 {fast}")
        A(f"s_cmp_lt_u32 s{T2}, {hi_cnt}")
        A(f"s_cbranch_scc1 {l1}")
        A(f"s_sleep {hi_sleep}")
        A(f"s_branch {slow}")
        self.lab(l1)
        A(f"s_sleep {mid_sleep}")
        A(f"s_branch {slow}")
        self.lab(fast)
        for k in range(NS):
            issue(sets[k])
            if k < NS - 1: A(f"s_sleep {self.stag}")
        self.lab(floop)
        for k in range(NS):
            A(f"s_waitcnt vmcnt({2 * (NS - 1)})")
            check(sets[k], done)
            issue(sets[k])
        A("s_sub_u32 s60, s60, 1")
        A(f"s_cbranch_scc0 {floop}")
        self.lab(done)
        A("s_mov_b64 exec, -1")
        self.timeout_mark(4)

    def lds_wait(self, emit_read_and_test, sleep=8):
        A = self.A
        lp = self.newlab("ldsw"); ld = self.newlab("ldsd")
        A(f"s_mov_b32 s60, {self.spin_limit}")
        self.lab(lp)
        emit_read_and_test()
        A(f"s_cbranch_scc1 {ld}")
        A("s_sub_u32 s60, s60, 1")
        A(f"s_cbranch_scc1 {ld}")
        A(f"s_sleep {sleep}")
        A(f"s_branch {lp}")
        self.lab(ld)
        self.timeout_mark(5)

    def helper(self):
        A = self.A
        XS, WQS, WOS, WGS, WUS, WDS, OUTS, WSS = 12, 16, 16, 20, 24, 28, 32, 40
        SH, SB, SHW, SCG, SU, STAG, SFF = 61, 62, 63, 4, 5, 6, 7
        T0, T1, T2, T3, T4, T5 = 84, 85, 86, 87, 88, 89
        self.T = (T0, T1, T2, T3, T4, T5)
        self.SFF, self.STAG = SFF, STAG
        W0 = 64
        ACC = list(range(16, 24))
        self.lab("L_helper")
        A("s_load_dwordx2 s[44:45], s[0:1], 0")
        A("s_load_dwordx2 s[46:47], s[0:1], 24")
        A("s_load_dwordx2 s[50:51], s[0:1], 88")
        A(f"s_sub_u32 s{SHW}, s3, 4")
        if self.prefetch_code:
            lnp = self.newlab("nopf")
            A(f"s_cmp_eq_u32 s{SHW}, 3")
            A(f"s_cbranch_scc0 {lnp}")
            A("s_getpc_b64 s[90:91]")
            self.lab("L_pc_ref")
            A(f"s_sub_u32 s90, s90, L_pc_ref-{KNAME}")
            A("s_subb_u32 s91, s91, 0")
            A(f"s_lshr_b32 s{T0}, s2, 3")
            A(f"s_lshl_b32 s{T0}, s{T0}, 10")
            A("v_lshlrev_b32 v10, 4, v2")
            A(f"v_add_u32 v10, s{T0}, v10")
            A("PREFETCH_PLACEHOLDER")
            self.lab(lnp)
        A(f"s_and_b32 s{SH}, s2, 7")
        A(f"s_bfe_u32 s{T0}, s2, 0x20003")
        A(f"s_lshl_b32 s{T0}, s{T0}, 3")
        A(f"s_add_u32 s{SH}, s{SH}, s{T0}")
        A(f"s_lshr_b32 s{SB}, s2, 6")
        A(f"s_and_b32 s{SCG}, s2, 7")
        A(f"s_lshl_b32 s{SCG}, s{SCG}, 3")
        A(f"s_bfe_u32 s{T0}, s2, 0x30003")
        A(f"s_add_u32 s{SCG}, s{SCG}, s{T0}")
        A(f"s_and_b32 s{SU}, s2, 7")
        A(f"s_mul_i32 s{SU}, s{SU}, 6")
        A(f"s_add_u32 s{SU}, s{SU}, s{T0}")
        A(f"s_cmp_ge_u32 s{T0}, 6")
        A(f"s_cselect_b32 s{SU}, 63, s{SU}")
        if self.ffn4:
            A(f"s_and_b32 s{T0}, s{T0}, 3")
            A(f"s_cmp_lg_u32 s{T0}, s{SB}")
            A(f"s_cselect_b32 s{SU}, 63, s{SU}")
        A("v_lshrrev_b32 v3, 4, v2")
        A("v_and_b32 v4, 15, v2")
        A(f"s_lshl_b32 s{T1}, s{SB}, 10")
        A("v_lshlrev_b32 v5, 4, v2")
        A(f"v_add_u32 v5, s{T1}, v5")
        A(f"s_lshl_b32 s{T2}, s{SHW}, 7")
        A("v_lshl_add_u32 v6, v4, 2, v3")
        A(f"v_add_u32 v6, s{T2}, v6")
        A("v_lshlrev_b32 v7, 1, v6")
        A(f"v_add_u32 v7, s{T1}, v7")
        A(f"v_add_u32 v8, s{T2}, v3")
        A("v_lshlrev_b32 v8, 13, v8")
        A(f"s_lshl_b32 s{T3}, s{SH}, 8")
        A(f"v_lshl_add_u32 v10, v4, 4, s{T3}")
        A("v_add_u32 v8, v8, v10")
        A(f"s_lshl_b32 s{T5}, s{SB}, 7")
        A(f"s_add_u32 s{T5}, s{T5}, {WS_N}")
        A("s_waitcnt lgkmcnt(0)")
        A(f"s_load_dword s{STAG}, s[50:51], s{T5}")
        self.srd(XS, 44, 4096)
        self.srd(WQS, 46, 0 if self.skip_wq else 0x400000)
        A(f"buffer_load_dwordx4 v[24:27], v5, s[{XS}:{XS+3}], 0 offen")
        A(f"buffer_load_ushort v28, v7, s[{XS}:{XS+3}], 0 offen")
        A(f"buffer_load_ushort v29, v7, s[{XS}:{XS+3}], 0 offen offset:128")
        A(f"s_mov_b32 s{T4}, 0")
        def wq_issue(i):
            A(f"buffer_load_dwordx4 v[{W0+4*i}:{W0+4*i+3}], v8, s[{WQS}:{WQS+3}], s{T4} offen {self.wflags}")
            if i < 31: A(f"s_add_u32 s{T4}, s{T4}, 0x8000")
        DQ = self.DQ
        for i in range(DQ):
            wq_issue(i)
        self.srd(WSS, 50, WS_SZ)
        nwarm = 0
        if self.tlbwarm:
            lw = self.newlab("nowarm")
            A(f"s_cmp_eq_u32 s{SHW}, 2"); A(f"s_cbranch_scc0 {lw}")
            A("s_load_dwordx2 s[52:53], s[0:1], 16")
            A("s_load_dwordx2 s[54:55], s[0:1], 32")
            A("s_load_dwordx4 s[56:59], s[0:1], 48")
            A("s_load_dwordx4 s[92:95], s[0:1], 64")
            A(f"s_lshl_b32 s{T0}, s{SB}, 5"); A(f"s_add_u32 s{T0}, s{T0}, s{SH}"); A(f"s_lshl_b32 s{T0}, s{T0}, 1")
            A(f"s_bfe_u32 s{T1}, s2, 0x10005"); A(f"s_add_u32 s{T0}, s{T0}, s{T1}"); A(f"s_lshl_b32 s{T0}, s{T0}, 20")
            A(f"v_mov_b32 v50, s{T0}")
            A(f"s_lshl_b32 s{T1}, s{SH}, 17"); A(f"v_mov_b32 v51, s{T1}")
            A("v_mov_b32 v52, 0")
            A(f"s_lshl_b32 s{T1}, s2, 11"); A(f"v_mov_b32 v53, s{T1}")
            A("s_waitcnt lgkmcnt(0)")
            A("s_mov_b64 exec, 1")
            A("global_load_dword v54, v50, s[52:53] nt")
            A("global_load_dword v55, v51, s[54:55] nt")
            A("global_load_dword v56, v52, s[56:57] nt")
            A("global_load_dword v57, v52, s[58:59] nt")
            A("global_load_dword v58, v52, s[92:93] nt")
            A("global_load_dword v59, v52, s[94:95] nt")
            A("global_load_dword v60, v53, s[50:51] nt")
            A("s_mov_b64 exec, -1")
            self.lab(lw)
        self.stamp(1)
        A("v_mov_b32 v12, 0")
        if self.ctl and self.mask_src == 'ffn':
            A(f"s_cmp_lt_u32 s{SU}, 43")
            A(f"s_cselect_b32 s{T0}, {self.mask}, {self.mask2}")
            A(f"v_mov_b32 v15, s{T0}")
        else:
            A(f"v_mov_b32 v15, {self.mask if self.ctl else 0}")
        A("v_lshlrev_b32 v13, 2, v2")
        A("s_mov_b64 exec, 15")
        A(f"ds_write_b32 v13, v12 offset:{L_FL}")
        A(f"ds_write_b32 v13, v12 offset:{L_PR}")
        A(f"ds_write_b32 v13, v15 offset:{L_MK}")
        A("s_mov_b64 exec, -1")
        A(f"s_waitcnt vmcnt({DQ})")
        for j in range(4):
            A(f"v_lshlrev_b32 v{36+2*j}, 16, v{24+j}")
            A(f"v_and_b32 v{37+2*j}, 0xffff0000, v{24+j}")
        A("v_add_f32 v44, v36, v37")
        for j in range(2, 8):
            A(f"v_add_f32 v44, v44, v{36+j}")
        self.allreduce("v_add_f32", 44, 45)
        A("v_mul_f32 v44, 0x3b000000, v44")
        for j in range(8):
            A(f"v_sub_f32 v{36+j}, v{36+j}, v44")
        A("v_mul_f32 v46, v36, v36")
        for j in range(1, 8):
            A(f"v_fmac_f32 v46, v{36+j}, v{36+j}")
        self.allreduce("v_add_f32", 46, 45)
        A("v_mul_f32 v46, 0x3b000000, v46")
        self.round_bf16(44, 44)
        self.round_bf16(46, 46)
        A("v_add_f32 v46, 0x3727c5ac, v46")
        self.round_bf16(46, 46)
        A("v_sqrt_f32 v47, v46")
        A("s_nop 0")
        A("v_rcp_f32 v45, v47")
        A("v_fma_f32 v48, -v47, v47, v46")
        A("v_mul_f32 v45, 0.5, v45")
        A("v_fmac_f32 v47, v48, v45")
        self.round_bf16(47, 47)
        A("v_rcp_f32 v45, v47")
        for reg in (28, 29):
            A(f"v_lshlrev_b32 v{reg}, 16, v{reg}")
            A(f"v_sub_f32 v{reg}, v{reg}, v44")
            self.round_bf16(reg, reg)
            A(f"v_mul_f32 v48, v{reg}, v45")
            A(f"v_fma_f32 v49, -v48, v47, v{reg}")
            A(f"v_fmac_f32 v48, v49, v45")
            A(f"v_cvt_pk_bf16_f32 v{reg}, v48, 0")
        XL = (28, 29); XH = (30, 31)
        A("v_lshlrev_b32 v30, 16, v28")
        A("v_lshlrev_b32 v31, 16, v29")
        A("v_lshlrev_b32 v10, 2, v6")
        A(f"ds_write_b32 v10, v28 offset:{L_XN}")
        A(f"ds_write_b32 v10, v29 offset:{L_XN + 256}")
        for e in range(8):
            A(f"v_mov_b32 v{ACC[e]}, 0")
        self.stamp(2)
        for i in range(32):
            A(f"s_waitcnt vmcnt({min(DQ - 1, 31 - i)})")
            if i + DQ < 32: wq_issue(i + DQ)
            s = W0 + 4 * i
            for e in range(4):
                A(f"v_dot2c_f32_bf16_dpp v{ACC[2*e]}, v{XL[i>>4]}, v{s+e} row_newbcast:{i&15} {DPPF}")
                A(f"v_dot2c_f32_bf16_dpp v{ACC[2*e+1]}, v{XH[i>>4]}, v{s+e} row_newbcast:{i&15} {DPPF}")
        A("v_lshlrev_b32 v11, 3, v3")
        A("v_lshl_add_u32 v11, v4, 5, v11")
        A(f"s_lshl_b32 s{T0}, s{SHW}, 9")
        A(f"v_add_u32 v10, s{T0}, v11")
        self.reduce8_rows(ACC)
        A(f"ds_write_b64 v10, v[{ACC[0]}:{ACC[1]}] offset:{L_QP}")
        A("s_waitcnt lgkmcnt(0)")
        self.stamp(3)
        A("s_barrier")
        if self.helper_exit:
            for k in range(4, 9): self.stamp(k)
            self.write_stamps(9)
            A("s_endpgm")
        A("s_load_dwordx8 s[52:59], s[0:1], 48")
        A("s_load_dwordx2 s[46:47], s[0:1], 32")
        A(f"s_add_u32 s{STAG}, s{STAG}, 1")
        A(f"s_and_b32 s{T0}, s{STAG}, 0xff")
        A(f"v_mov_b32 v12, s{T0}")
        A(f"s_movk_i32 s{SFF}, 0xff")
        if self.ctl:
            A("v_mov_b32 v32, 0")
            lc0 = self.newlab("noctl0")
            A(f"s_cmp_eq_u32 s{SHW}, {self.ctl_wave}"); A(f"s_cbranch_scc0 {lc0}")
            A("s_waitcnt lgkmcnt(0)")
            self.ctl_setup(STAG)
            for c in range(self.ncp_early):
                self.ctl_checkpoint(WSS, c)
            self.lab(lc0)
        A("v_lshrrev_b32 v9, 3, v2")
        A(f"s_lshl_b32 s{T0}, s{SB}, 9")
        A(f"s_lshl_b32 s{T1}, s{SCG}, 3")
        A(f"s_add_u32 s{T0}, s{T0}, s{T1}")
        A(f"v_add_u32 v9, s{T0}, v9")
        A("v_lshlrev_b32 v9, 1, v9")
        A(f"buffer_load_ushort v14, v9, s[{XS}:{XS+3}], 0 offen")
        A("s_waitcnt lgkmcnt(0)")
        self.srd(WOS, 46, 0x400000)
        self.srd(WGS, 52, 512 * 2752)
        self.srd(WUS, 54, 512 * 2752)
        self.srd(WDS, 56, 1376 * 1024)
        self.srd(OUTS, 58, 4096)
        lnf = self.newlab("noffn")
        A(f"s_cmp_eq_u32 s{SHW}, {self.ffn_wave}"); A(f"s_cbranch_scc0 {lnf}")
        A(f"s_cmp_ge_u32 s{SU}, 43"); A(f"s_cbranch_scc1 {lnf}")
        if self.do_ffn:
            if self.ffn4: self.ffn_unit4(XS, WGS, WUS, WDS, WSS, SU)
            else: self.ffn_unit(WGS, WUS, WDS, WSS, SU, SB)
        self.lab(lnf)
        A("v_lshlrev_b32 v8, 11, v3")
        A("v_lshl_add_u32 v8, v4, 4, v8")
        A(f"s_lshl_b32 s{T0}, s{SH}, 17")
        A(f"s_lshl_b32 s{T1}, s{SHW}, 8")
        A(f"s_add_u32 s{T0}, s{T0}, s{T1}")
        A(f"v_add_u32 v8, s{T0}, v8")
        A(f"s_mov_b32 s{T4}, 0")
        A(f"s_mov_b32 s{T0}, 0x05040100")
        A(f"s_mov_b32 s{T1}, 0x07060302")
        P = [[None] * 8 for _ in range(16)]
        spare = [W0 + 128]
        def wo_issue(n):
            k, half = n >> 1, n & 1
            r0 = W0 + 8 * k + 4 * half
            A(f"buffer_load_dwordx4 v[{r0}:{r0+3}], v8, s[{WOS}:{WOS+3}], s{T4} offen offset:{1024*half} {self.woflags}")
            if half == 1 and k < 15: A(f"s_add_u32 s{T4}, s{T4}, 0x2000")
        def wo_consume(n):
            k, half = n >> 1, n & 1
            if half == 0: return
            for j in range(4):
                a, b_ = W0 + 8 * k + j, W0 + 8 * k + 4 + j
                A(f"v_perm_b32 v{spare[0]}, v{b_}, v{a}, s{T0}")
                A(f"v_perm_b32 v{a}, v{b_}, v{a}, s{T1}")
                P[k][2 * j] = spare[0]
                P[k][2 * j + 1] = a
                spare[0] = b_
        if self.do_wo:
            self.paced(32, self.DO, wo_issue, wo_consume)
        else:
            for k in range(16):
                for e in range(8): P[k][e] = W0 + 8 * k + e
        self.stamp(4)
        ljoin = self.newlab("join")
        A(f"s_cmp_eq_u32 s{SHW}, 1"); A(f"s_cbranch_scc0 {ljoin}")
        if self.do_exch: self.exchange(WSS, SB, SCG)
        self.lab(ljoin)
        if self.ctl:
            lc = self.newlab("noctl")
            A(f"s_cmp_eq_u32 s{SHW}, {self.ctl_wave}"); A(f"s_cbranch_scc0 {lc}")
            for c in range(self.ncp_early, len(self.cps)):
                self.ctl_checkpoint(WSS, c)
            for g in self.repf:
                if g > self.cps[-1][1]:
                    A("v_mov_b32 v10, 0")
                    def test(g=g):
                        A(f"ds_read_b32 v30, v10 offset:{L_PR}")
                        A("s_waitcnt lgkmcnt(0)")
                        A(f"v_readfirstlane_b32 s{T0}, v30")
                        A("s_nop 3")
                        A(f"s_cmp_ge_u32 s{T0}, {g}")
                    self.lds_wait(test, sleep=self.csleep)
                    self.code_prefetch_again()
            self.lab(lc)
        if not self.do_tail:
            for k in range(5, 9): self.stamp(k)
            self.write_stamps(9)
            A("s_endpgm")
        self.stamp(5)
        A("s_waitcnt vmcnt(0) lgkmcnt(0)")
        A("s_barrier")
        self.stamp(6)
        A("v_mov_b32 v10, 0")
        A(f"ds_read_b128 v[24:27], v10 offset:{L_SC}")
        for w in range(4):
            A(f"ds_read_b64 v[{32+2*w}:{33+2*w}], v11 offset:{L_OP + 512*w}")
        for e in range(8):
            A(f"v_mov_b32 v{ACC[e]}, 0")
        if self.ytr:
            A(f"s_lshl_b32 s{T0}, s{SB}, 17")
            A(f"s_lshl_b32 s{T1}, s{SHW}, 15")
            A(f"s_add_u32 s{T0}, s{T0}, s{T1}")
            A(f"s_and_b32 s{T1}, s2, 63")
            A(f"s_lshl_b32 s{T1}, s{T1}, 5")
            A(f"s_add_u32 s{T0}, s{T0}, s{T1}")
            A("v_lshlrev_b32 v10, 3, v3")
            A("v_lshl_add_u32 v11, v4, 11, v10")
        else:
            A(f"s_lshl_b32 s{T0}, s2, 11")
            A(f"s_lshl_b32 s{T1}, s{SHW}, 9")
            A(f"s_add_u32 s{T0}, s{T0}, s{T1}")
        A("s_waitcnt lgkmcnt(0)")
        A("v_mul_f32 v28, v24, v32")
        A("v_mul_f32 v29, v24, v33")
        for w in range(1, 4):
            A(f"v_fmac_f32 v28, v{24+w}, v{32+2*w}")
            A(f"v_fmac_f32 v29, v{24+w}, v{33+2*w}")
        A("v_cvt_pk_bf16_f32 v28, v28, v29")
        A("s_nop 1")
        for k in range(16):
            for e in range(8):
                A(f"v_dot2c_f32_bf16_dpp v{ACC[e]}, v28, v{P[k][e]} row_newbcast:{k} {DPPF}")
        A("s_nop 2")
        self.reduce8_rows(ACC)
        self.tag(ACC[0]); self.tag(ACC[1])
        A(f"buffer_store_dwordx2 v[{ACC[0]}:{ACC[1]}], v11, s[{WSS}:{WSS+3}], s{T0} offen {self.ypubflags or self.pubflags}")
        self.stamp(7)
        lend = self.newlab("hend")
        A(f"s_cmp_eq_u32 s{SHW}, 0")
        A(f"s_cbranch_scc0 {lend}")
        if not self.do_final: A(f"s_branch {lend}")
        A("v_lshrrev_b32 v10, 3, v2")
        A("v_lshlrev_b32 v10, 2, v10")
        A(f"ds_read_b32 v24, v10 offset:{L_G}")
        if self.ytr:
            A("v_lshlrev_b32 v10, 5, v2")
            A(f"s_lshl_b32 s{T0}, s{SB}, 17")
            A(f"s_lshl_b32 s{T1}, s{SCG}, 11")
        else:
            A("v_lshlrev_b32 v10, 11, v2")
            A(f"s_lshl_b32 s{T0}, s{SB}, 17")
            A(f"s_lshl_b32 s{T1}, s{SCG}, 5")
        A(f"s_add_u32 s{T0}, s{T0}, s{T1}")
        if self.fpoll == 'simple':
            self.poll(32, 8, 10, WSS, T0, self.fsleep)
        else:
            self.poll_final(32, 10, WSS, T0)
        A("s_nop 1")
        self.reduce8_wave(list(range(32, 40)))
        A("s_waitcnt lgkmcnt(0)")
        self.round_bf16(32, 32)
        A("v_mul_f32 v32, v32, v24")
        self.round_bf16(32, 32)
        A("v_lshlrev_b32 v14, 16, v14")
        A("v_add_f32 v32, v14, v32")
        A("v_cvt_pk_bf16_f32 v32, v32, v32")
        A("v_and_b32 v10, 7, v2")
        A("v_cmp_eq_u32 vcc, 0, v10")
        A("s_nop 1")
        A(f"s_and_saveexec_b64 s[{T2}:{T3}], vcc")
        A(f"buffer_store_short v32, v9, s[{OUTS}:{OUTS+3}], 0 offen {self.outflags}")
        A(f"s_mov_b64 exec, s[{T2}:{T3}]")
        A(f"s_and_b32 s{T0}, s2, 63")
        A(f"s_cmp_eq_u32 s{T0}, 0")
        A(f"s_cbranch_scc0 {lend}")
        A(f"v_mov_b32 v10, s{T5}")
        A(f"v_mov_b32 v13, s{STAG}")
        A("s_mov_b64 exec, 1")
        A(f"buffer_store_dword v13, v10, s[{WSS}:{WSS+3}], 0 offen {self.outflags}")
        A("s_mov_b64 exec, -1")
        self.lab(lend)
        self.stamp(8)
        self.write_stamps(9, extra=range(52, 60) if self.ctl else ())
        A("s_endpgm")

    def code_prefetch_again(self):
        A = self.A
        T0 = self.T[0]
        l = self.newlab("pcr")
        A("s_getpc_b64 s[90:91]")
        self.lab(l)
        A(f"s_sub_u32 s90, s90, {l}-{KNAME}")
        A("s_subb_u32 s91, s91, 0")
        A(f"s_lshr_b32 s{T0}, s2, 3")
        A(f"s_lshl_b32 s{T0}, s{T0}, 10")
        A("v_lshlrev_b32 v33, 4, v2")
        A(f"v_add_u32 v33, s{T0}, v33")
        for i in range(2):
            A(f"v_min_u32 v34, L_code_end-{KNAME}-16, v33")
            A("global_load_dwordx4 v[196:199], v34, s[90:91]")
            A("v_add_u32 v33, 0x8000, v33")

    def ctl_setup(self, STAG):
        A = self.A
        T0, T1, T2, T3, T4, T5 = self.T
        A("v_mov_b32 v10, 0")
        A(f"ds_read_b32 v24, v10 offset:{L_MK}")
        A(f"s_and_b32 s{T2}, s{STAG}, 0xffff")
        A(f"s_lshl_b32 s93, s{T2}, 16")
        A("v_lshlrev_b32 v25, 2, v2")
        A("v_and_b32 v31, 7, v2")
        A(f"s_lshr_b32 s{T0}, s2, 3")
        A(f"s_and_b32 s{T1}, s2, 7")
        A(f"s_sub_u32 s{T1}, s{T0}, s{T1}")
        A(f"v_add_u32 v32, s{T1}, v31")
        A("v_lshrrev_b32 v33, 3, v2")
        A("v_lshl_add_u32 v32, v33, 2, v32")
        A("v_and_b32 v32, 7, v32")
        A(f"s_and_b32 s{T0}, s{T0}, 24")
        A(f"v_or_b32 v32, s{T0}, v32")
        A("v_lshl_add_u32 v32, v32, 3, v31")
        A("v_lshlrev_b32 v32, 7, v32")
        A("s_waitcnt lgkmcnt(0)")
        A("v_readfirstlane_b32 s92, v24")

    def ctl_checkpoint(self, WSS, c):
        A = self.A
        T0, T1, T2, T3, T4, T5 = self.T
        SM, NB = 92, self.nbud
        gc, gr, gs, nmax = self.cps[c]
        A("v_mov_b32 v10, 0")
        def wait_prog(g):
            def test():
                A(f"ds_read_b32 v30, v10 offset:{L_PR}")
                A("s_waitcnt lgkmcnt(0)")
                A(f"v_readfirstlane_b32 s{T0}, v30")
                A("s_nop 3")
                A(f"s_cmp_ge_u32 s{T0}, {g}")
            self.lds_wait(test, sleep=self.csleep)
        if gc > 0: wait_prog(gc)
        if gc in self.repf: self.code_prefetch_again()
        if gc in self.vtouch:
            A("s_load_dwordx2 s[90:91], s[0:1], 16")
            A(f"s_lshl_b32 s{T0}, s62, 5"); A(f"s_add_u32 s{T0}, s{T0}, s61"); A(f"s_lshl_b32 s{T0}, s{T0}, 1")
            A(f"s_bfe_u32 s{T1}, s2, 0x10005"); A(f"s_add_u32 s{T0}, s{T0}, s{T1}"); A(f"s_lshl_b32 s{T0}, s{T0}, 20")
            A(f"v_mov_b32 v33, s{T0}")
            A("s_waitcnt lgkmcnt(0)")
            A("s_mov_b64 exec, 1")
            A("global_load_dword v34, v33, s[90:91] nt")
            A("s_mov_b64 exec, -1")
        A("s_memrealtime s[94:95]")
        A(f"s_mov_b32 s{T1}, {WS_TT + 32768 * c}")
        A(f"s_lshl_b32 s{T3}, s2, 7")
        A(f"v_mov_b32 v26, s{T3}")
        A("s_waitcnt lgkmcnt(0)")
        A("s_and_b32 s94, s94, 0xffff")
        A("s_or_b32 s94, s94, s93")
        A("v_mov_b32 v27, s94")
        A("s_mov_b64 exec, 1")
        A(f"buffer_store_dword v27, v26, s[{WSS}:{WSS+3}], s{T1} offen {self.pubflags}")
        A("s_mov_b64 exec, -1")
        wait_prog(gr)
        A("v_mov_b32 v28, 0")
        A(f"s_mov_b64 exec, {(1 << NB) - 1}")
        A(f"buffer_load_dword v28, v32, s[{WSS}:{WSS+3}], s{T1} offen sc1")
        A("s_mov_b64 exec, -1")
        A("s_waitcnt vmcnt(0)")
        A("v_xor_b32 v29, s93, v28")
        A("v_lshrrev_b32 v29, 16, v29")
        A("v_cmp_eq_u32 vcc, 0, v29")
        A("v_sub_u32 v28, v28, v27")
        A("v_bfe_i32 v28, v28, 0, 16")
        A("v_add_u32 v29, 1500, v28")
        A(f"s_mov_b64 s[{T2}:{T3}], vcc")
        A("v_cmp_gt_u32 vcc, 3000, v29")
        A(f"s_and_b64 s[{T2}:{T3}], s[{T2}:{T3}], {(1 << NB) - 1}")
        A(f"s_and_b64 vcc, vcc, s[{T2}:{T3}]")
        A("v_cvt_f32_i32 v28, v28")
        A(f"s_bcnt1_i32_b64 s{T0}, vcc")
        A("v_cndmask_b32 v28, 0, v28, vcc")
        A(f"s_max_u32 s{T0}, s{T0}, 1")
        A(f"v_cvt_f32_u32 v29, s{T0}")
        self.allreduce("v_add_f32", 28, 30)
        A("v_rcp_f32 v29, v29")
        A("s_nop 0")
        A("v_mul_f32 v28, v28, v29")
        import struct
        f2h = lambda x: "0x%08x" % struct.unpack("<I", struct.pack("<f", x))[0]
        cd = c - self.ncp_early
        if self.ts and 0 <= cd < 4:
            A("s_nop 0")
            A(f"v_readfirstlane_b32 s{52 + cd}, v28")
            A(f"s_mov_b32 s{56 + cd}, s{T0}")
        A(f"v_mul_f32 v28, {f2h(-1.0 / self.tau)}, v28")
        A(f"v_add_f32 v28, {f2h(0.5 - self.bias / self.tau)}, v28")
        A("v_max_f32 v28, 0, v28")
        A("v_cvt_u32_f32 v28, v28")
        A(f"v_min_u32 v28, {nmax}, v28")
        A("s_nop 0")
        A(f"v_readfirstlane_b32 s{T0}, v28")
        A("s_nop 3")
        A(f"s_bfm_b32 s{T0}, s{T0}, {gs}")
        A(f"s_{'andn2' if self.clear else 'or'}_b32 s{SM}, s{SM}, s{T0}")
        A(f"v_mov_b32 v28, s{SM}")
        A("s_mov_b64 exec, 15")
        A(f"ds_write_b32 v25, v28 offset:{L_MK}")
        A("s_mov_b64 exec, -1")

    def layernorm_row(self):
        A = self.A
        for j in range(4):
            A(f"v_lshlrev_b32 v{36+2*j}, 16, v{24+j}")
            A(f"v_and_b32 v{37+2*j}, 0xffff0000, v{24+j}")
        A("v_add_f32 v44, v36, v37")
        for j in range(2, 8):
            A(f"v_add_f32 v44, v44, v{36+j}")
        self.allreduce("v_add_f32", 44, 45)
        A("v_mul_f32 v44, 0x3b000000, v44")
        for j in range(8):
            A(f"v_sub_f32 v{36+j}, v{36+j}, v44")
        A("v_mul_f32 v46, v36, v36")
        for j in range(1, 8):
            A(f"v_fmac_f32 v46, v{36+j}, v{36+j}")
        self.allreduce("v_add_f32", 46, 45)
        A("v_mul_f32 v46, 0x3b000000, v46")
        self.round_bf16(44, 44)
        self.round_bf16(46, 46)
        A("v_add_f32 v46, 0x3727c5ac, v46")
        self.round_bf16(46, 46)
        A("v_sqrt_f32 v47, v46")
        A("s_nop 0")
        A("v_rcp_f32 v45, v47")
        A("v_fma_f32 v48, -v47, v47, v46")
        A("v_mul_f32 v45, 0.5, v45")
        A("v_fmac_f32 v47, v48, v45")
        self.round_bf16(47, 47)
        A("v_rcp_f32 v45, v47")

    def normalise(self, reg):
        A = self.A
        A(f"v_sub_f32 v{reg}, v{reg}, v44")
        self.round_bf16(reg, reg)
        A(f"v_mul_f32 v48, v{reg}, v45")
        A(f"v_fma_f32 v49, -v48, v47, v{reg}")
        A(f"v_fmac_f32 v48, v49, v45")
        A(f"v_cvt_pk_bf16_f32 v{reg}, v48, 0")

    def ffn_unit4(self, XS, WGS, WUS, WDS, WSS, SU):
        A = self.A
        T0, T1, T2, T3, T4, T5 = self.T
        G = [[64 + 8 * b + e for e in range(8)] for b in range(4)]
        U = [[96 + 8 * b + e for e in range(8)] for b in range(4)]
        LD = 200
        for b in range(4):
            A(f"s_load_dword s{52 + b}, s[50:51], {hex(WS_N + 128 * b)}")
        A("v_lshlrev_b32 v50, 4, v2")
        A("v_lshlrev_b32 v51, 5, v2")
        A(f"s_mov_b32 s{T3}, 4")
        lp = self.newlab("ln4")
        self.lab(lp)
        A(f"buffer_load_dwordx4 v[24:27], v50, s[{XS}:{XS+3}], 0 offen")
        A("s_waitcnt vmcnt(0)")
        self.layernorm_row()
        for j in range(4):
            A(f"v_lshlrev_b32 v{52+2*j}, 16, v{24+j}")
            A(f"v_and_b32 v{53+2*j}, 0xffff0000, v{24+j}")
        for j in range(8):
            self.normalise(52 + j)
        A(f"ds_write_b128 v51, v[52:55] offset:{L_X4}")
        A(f"ds_write_b128 v51, v[56:59] offset:{L_X4 + 16}")
        A("v_add_u32 v50, 0x400, v50")
        A("v_add_u32 v51, 0x800, v51")
        A(f"s_sub_u32 s{T3}, s{T3}, 1")
        A(f"s_cmp_lg_u32 s{T3}, 0")
        A(f"s_cbranch_scc1 {lp}")
        for b in range(4):
            for e in range(8):
                A(f"v_mov_b32 v{G[b][e]}, 0"); A(f"v_mov_b32 v{U[b][e]}, 0")
        A("v_lshrrev_b32 v60, 2, v2")
        A(f"s_movk_i32 s{T0}, 2752")
        A(f"v_mul_lo_u32 v61, v60, s{T0}")
        A("v_and_b32 v62, 3, v2")
        A("v_lshl_add_u32 v61, v62, 4, v61")
        A(f"s_lshl_b32 s{T1}, s{SU}, 6")
        A(f"v_add_u32 v61, s{T1}, v61")
        A("v_lshlrev_b32 v60, 2, v60")
        A(f"s_mov_b32 s{T4}, 0")
        A(f"s_mov_b32 s{T3}, 8")
        XL = [[16 + 4 * j + b for b in range(4)] for j in range(4)]
        XH = [[32 + 4 * j + b for b in range(4)] for j in range(4)]
        def f1_issue(j):
            A(f"buffer_load_dwordx4 v[{LD+8*j}:{LD+8*j+3}], v61, s[{WGS}:{WGS+3}], s{T4} offen {self.fflags}")
            A(f"buffer_load_dwordx4 v[{LD+8*j+4}:{LD+8*j+7}], v61, s[{WUS}:{WUS+3}], s{T4} offen {self.fflags}")
            A(f"s_add_u32 s{T4}, s{T4}, {16*2752}")
        def f1_consume(j):
            for b in range(4):
                for e in range(4):
                    A(f"v_dot2c_f32_bf16 v{G[b][2*e]}, v{XL[j][b]}, v{LD+8*j+e}")
                    A(f"v_dot2c_f32_bf16 v{G[b][2*e+1]}, v{XH[j][b]}, v{LD+8*j+e}")
                for e in range(4):
                    A(f"v_dot2c_f32_bf16 v{U[b][2*e]}, v{XL[j][b]}, v{LD+8*j+4+e}")
                    A(f"v_dot2c_f32_bf16 v{U[b][2*e+1]}, v{XH[j][b]}, v{LD+8*j+4+e}")
        def f1_pre():
            for j in range(4):
                for b in range(4):
                    A(f"ds_read_b32 v{XL[j][b]}, v60 offset:{L_X4 + 2048*b + 64*j}")
                if j == 1: A("s_waitcnt lgkmcnt(0)")
            A("v_add_u32 v60, 256, v60")
            A("s_waitcnt lgkmcnt(0)")
            for j in range(4):
                for b in range(4):
                    A(f"v_lshlrev_b32 v{XH[j][b]}, 16, v{XL[j][b]}")
        A("s_waitcnt lgkmcnt(0)")
        lp = self.newlab("f1")
        self.lab(lp)
        self.paced(4, self.DF1, f1_issue, f1_consume, per=2, pre=f1_pre)
        A(f"s_sub_u32 s{T3}, s{T3}, 1")
        A(f"s_cmp_lg_u32 s{T3}, 0")
        A(f"s_cbranch_scc1 {lp}")
        A("v_and_b32 v44, 3, v2")
        A("v_lshlrev_b32 v44, 3, v44")
        A("v_bfe_u32 v45, v2, 2, 2")
        A("v_add_u32 v44, v44, v45")
        A("v_bfe_u32 v45, v2, 4, 1")
        A("v_lshl_add_u32 v44, v45, 2, v44")
        A("v_lshlrev_b32 v44, 2, v44")
        for b in range(4):
            g, u = G[b], U[b]
            for e in range(8):
                A(f"v_permlane32_swap_b32 v{g[e]}, v{u[e]}")
            for e in range(8):
                A(f"v_add_f32 v{g[e]}, v{g[e]}, v{u[e]}")
            for e in range(4):
                A(f"v_permlane16_swap_b32 v{g[e]}, v{g[e+4]}")
            for e in range(4):
                A(f"v_add_f32 v{g[e]}, v{g[e]}, v{g[e+4]}")
            A("s_nop 0")
            for e in range(2):
                A(f"v_add_f32_dpp v{g[e]}, v{g[e]}, v{g[e]} row_ror:8 row_mask:0xf bank_mask:0x3")
                A(f"v_add_f32_dpp v{g[e]}, v{g[e+2]}, v{g[e+2]} row_ror:8 row_mask:0xf bank_mask:0xc")
            A("s_nop 1")
            A(f"v_add_f32_dpp v{g[0]}, v{g[0]}, v{g[0]} row_shl:4 row_mask:0xf bank_mask:0x5")
            A(f"v_add_f32_dpp v{g[0]}, v{g[1]}, v{g[1]} row_shr:4 row_mask:0xf bank_mask:0xa")
            A(f"v_mov_b32 v{u[0]}, v{g[0]}")
            A("s_nop 1")
            A(f"v_permlane32_swap_b32 v{g[0]}, v{u[0]}")
            self.round_bf16(g[0], g[0])
            self.round_bf16(u[0], u[0])
            x = g[0]
            A(f"v_mul_f32 v43, v{x}, v{x}")
            A(f"v_mul_f32 v43, v43, v{x}")
            A("v_mul_f32 v43, 0x3d372713, v43")
            A(f"v_add_f32 v43, v{x}, v43")
            A("v_mul_f32 v43, 0xc0135761, v43")
            A("v_exp_f32 v43, v43")
            A("s_nop 0")
            A("v_add_f32 v43, 1.0, v43")
            A("v_rcp_f32 v43, v43")
            A("s_nop 0")
            A(f"v_mul_f32 v43, v{x}, v43")
            self.round_bf16(43, 43)
            A(f"v_mul_f32 v43, v43, v{u[0]}")
            A("v_cvt_pk_bf16_f32 v43, v43, 0")
            A("s_mov_b32 exec_hi, 0")
            A(f"ds_write_b32 v44, v43 offset:{L_H4 + 128*b}")
            A("s_mov_b32 exec_hi, -1")
        A("v_lshlrev_b32 v44, 2, v4")
        HL = [[16 + 2 * b, 17 + 2 * b] for b in range(4)]
        HH = [[24 + 2 * b, 25 + 2 * b] for b in range(4)]
        for b in range(4):
            A(f"ds_read_b32 v{HL[b][0]}, v44 offset:{L_H4 + 128*b}")
            A(f"ds_read_b32 v{HL[b][1]}, v44 offset:{L_H4 + 128*b + 64}")
        Y = [[64 + 8 * b + e for e in range(8)] for b in range(4)]
        for b in range(4):
            for e in range(8):
                A(f"v_mov_b32 v{Y[b][e]}, 0")
        A("s_waitcnt lgkmcnt(0)")
        for b in range(4):
            for k in range(2):
                A(f"v_lshlrev_b32 v{HH[b][k]}, 16, v{HL[b][k]}")
        A("v_lshlrev_b32 v61, 4, v2")
        A(f"s_lshl_b32 s{T4}, s{SU}, 15")
        def f2_issue(i):
            j = i % 8
            A(f"buffer_load_dwordx4 v[{LD+4*j}:{LD+4*j+3}], v61, s[{WDS}:{WDS+3}], s{T4} offen {self.fflags}")
            A(f"s_add_u32 s{T4}, s{T4}, 0x400")
        def f2_consume(i):
            j = i % 8
            for b in range(4):
                for e in range(4):
                    A(f"v_dot2c_f32_bf16_dpp v{Y[b][2*e]}, v{HL[b][i>>4]}, v{LD+4*j+e} row_newbcast:{i&15} {DPPF}")
                    A(f"v_dot2c_f32_bf16_dpp v{Y[b][2*e+1]}, v{HH[b][i>>4]}, v{LD+4*j+e} row_newbcast:{i&15} {DPPF}")
        self.paced(32, self.DF2, f2_issue, f2_consume)
        A("s_nop 2")
        A("v_lshlrev_b32 v61, 5, v2")
        A(f"s_lshl_b32 s{T0}, s{SU}, 11")
        A(f"s_add_u32 s{T0}, s{T0}, {WS_Y2}")
        for b in range(4):
            A(f"s_add_u32 s{T1}, s{52 + b}, 1")
            A(f"s_and_b32 s{T1}, s{T1}, 0xff")
            A(f"v_mov_b32 v60, s{T1}")
            for e in range(8):
                A(f"v_bfi_b32 v{Y[b][e]}, s{self.SFF}, v60, v{Y[b][e]}")
            A(f"buffer_store_dwordx4 v[{Y[b][0]}:{Y[b][3]}], v61, s[{WSS}:{WSS+3}], s{T0} offen {self.pubflags}")
            A(f"buffer_store_dwordx4 v[{Y[b][4]}:{Y[b][7]}], v61, s[{WSS}:{WSS+3}], s{T0} offen offset:16 {self.pubflags}")
            if b < 3: A(f"s_add_u32 s{T0}, s{T0}, {43 * 2048}")

    def ffn_unit(self, WGS, WUS, WDS, WSS, SU, SB):
        A = self.A
        T0, T1, T2, T3, T4, T5 = self.T
        G = list(range(16, 24)); U = list(range(24, 32))
        LD = 200
        XV = 32
        for e in range(8):
            A(f"v_mov_b32 v{G[e]}, 0"); A(f"v_mov_b32 v{U[e]}, 0")
        A("v_lshrrev_b32 v40, 2, v2")
        A(f"s_movk_i32 s{T0}, 2752")
        A(f"v_mul_lo_u32 v41, v40, s{T0}")
        A("v_and_b32 v42, 3, v2")
        A("v_lshl_add_u32 v41, v42, 4, v41")
        A(f"s_lshl_b32 s{T1}, s{SU}, 6")
        A(f"v_add_u32 v41, s{T1}, v41")
        A("v_lshlrev_b32 v40, 2, v40")
        A(f"s_mov_b32 s{T4}, 0")
        A(f"s_mov_b32 s{T3}, 8")
        def f1_issue(j):
            A(f"buffer_load_dwordx4 v[{LD+8*j}:{LD+8*j+3}], v41, s[{WGS}:{WGS+3}], s{T4} offen {self.fflags}")
            A(f"buffer_load_dwordx4 v[{LD+8*j+4}:{LD+8*j+7}], v41, s[{WUS}:{WUS+3}], s{T4} offen {self.fflags}")
            A(f"s_add_u32 s{T4}, s{T4}, {16*2752}")
        def f1_consume(j):
            for e in range(4):
                A(f"v_dot2c_f32_bf16 v{G[2*e]}, v{XV+j}, v{LD+8*j+e}")
                A(f"v_dot2c_f32_bf16 v{G[2*e+1]}, v{XV+4+j}, v{LD+8*j+e}")
            for e in range(4):
                A(f"v_dot2c_f32_bf16 v{U[2*e]}, v{XV+j}, v{LD+8*j+4+e}")
                A(f"v_dot2c_f32_bf16 v{U[2*e+1]}, v{XV+4+j}, v{LD+8*j+4+e}")
        def f1_pre():
            for j in range(4):
                A(f"ds_read_b32 v{XV+j}, v40 offset:{L_XN + 64*j}")
            A("v_add_u32 v40, 256, v40")
            A("s_waitcnt lgkmcnt(0)")
            for j in range(4):
                A(f"v_lshlrev_b32 v{XV+4+j}, 16, v{XV+j}")
        lp = self.newlab("f1")
        self.lab(lp)
        self.paced(4, self.DF1, f1_issue, f1_consume, per=2, pre=f1_pre)
        A(f"s_sub_u32 s{T3}, s{T3}, 1")
        A(f"s_cmp_lg_u32 s{T3}, 0")
        A(f"s_cbranch_scc1 {lp}")
        A("s_nop 2")
        for e in range(8):
            A(f"v_permlane32_swap_b32 v{G[e]}, v{U[e]}")
        for e in range(8):
            A(f"v_add_f32 v{G[e]}, v{G[e]}, v{U[e]}")
        for e in range(4):
            A(f"v_permlane16_swap_b32 v{G[e]}, v{G[e+4]}")
        for e in range(4):
            A(f"v_add_f32 v{G[e]}, v{G[e]}, v{G[e+4]}")
        A("s_nop 0")
        for e in range(2):
            A(f"v_add_f32_dpp v{G[e]}, v{G[e]}, v{G[e]} row_ror:8 row_mask:0xf bank_mask:0x3")
            A(f"v_add_f32_dpp v{G[e]}, v{G[e+2]}, v{G[e+2]} row_ror:8 row_mask:0xf bank_mask:0xc")
        A("s_nop 1")
        A(f"v_add_f32_dpp v{G[0]}, v{G[0]}, v{G[0]} row_shl:4 row_mask:0xf bank_mask:0x5")
        A(f"v_add_f32_dpp v{G[0]}, v{G[1]}, v{G[1]} row_shr:4 row_mask:0xf bank_mask:0xa")
        A(f"v_mov_b32 v{U[0]}, v{G[0]}")
        A("s_nop 1")
        A(f"v_permlane32_swap_b32 v{G[0]}, v{U[0]}")
        self.round_bf16(G[0], G[0])
        self.round_bf16(U[0], U[0])
        x = G[0]
        A(f"v_mul_f32 v43, v{x}, v{x}")
        A(f"v_mul_f32 v43, v43, v{x}")
        A("v_mul_f32 v43, 0x3d372713, v43")
        A(f"v_add_f32 v43, v{x}, v43")
        A("v_mul_f32 v43, 0xc0135761, v43")
        A("v_exp_f32 v43, v43")
        A("s_nop 0")
        A("v_add_f32 v43, 1.0, v43")
        A("v_rcp_f32 v43, v43")
        A("s_nop 0")
        A(f"v_mul_f32 v43, v{x}, v43")
        self.round_bf16(43, 43)
        A(f"v_mul_f32 v43, v43, v{U[0]}")
        A("v_cvt_pk_bf16_f32 v43, v43, 0")
        A("v_and_b32 v44, 3, v2")
        A("v_lshlrev_b32 v44, 3, v44")
        A("v_bfe_u32 v45, v2, 2, 2")
        A("v_add_u32 v44, v44, v45")
        A("v_bfe_u32 v45, v2, 4, 1")
        A("v_lshl_add_u32 v44, v45, 2, v44")
        A("v_lshlrev_b32 v44, 2, v44")
        A("s_mov_b32 exec_hi, 0")
        A(f"ds_write_b32 v44, v43 offset:{L_HL}")
        A("s_mov_b32 exec_hi, -1")
        A("v_lshlrev_b32 v44, 2, v4")
        A(f"ds_read_b32 v32, v44 offset:{L_HL}")
        A(f"ds_read_b32 v33, v44 offset:{L_HL + 64}")
        for e in range(8):
            A(f"v_mov_b32 v{G[e]}, 0")
        A("s_waitcnt lgkmcnt(0)")
        A("v_lshlrev_b32 v34, 16, v32")
        A("v_lshlrev_b32 v35, 16, v33")
        A("v_lshlrev_b32 v41, 4, v2")
        A(f"s_lshl_b32 s{T4}, s{SU}, 15")
        def f2_issue(i):
            j = i % 8
            A(f"buffer_load_dwordx4 v[{LD+4*j}:{LD+4*j+3}], v41, s[{WDS}:{WDS+3}], s{T4} offen {self.fflags}")
            A(f"s_add_u32 s{T4}, s{T4}, 0x400")
        def f2_consume(i):
            j = i % 8
            for e in range(4):
                A(f"v_dot2c_f32_bf16_dpp v{G[2*e]}, v{32 + (i>>4)}, v{LD+4*j+e} row_newbcast:{i&15} {DPPF}")
                A(f"v_dot2c_f32_bf16_dpp v{G[2*e+1]}, v{34 + (i>>4)}, v{LD+4*j+e} row_newbcast:{i&15} {DPPF}")
        assert self.DF2 <= 7
        self.paced(32, self.DF2, f2_issue, f2_consume)
        A("s_nop 2")
        for e in range(8):
            self.tag(G[e])
        A(f"s_mul_i32 s{T0}, s{SB}, 43")
        A(f"s_add_u32 s{T0}, s{T0}, s{SU}")
        A(f"s_lshl_b32 s{T0}, s{T0}, 11")
        A(f"s_add_u32 s{T0}, s{T0}, {WS_Y2}")
        A("v_lshlrev_b32 v41, 5, v2")
        A(f"buffer_store_dwordx4 v[{G[0]}:{G[3]}], v41, s[{WSS}:{WSS+3}], s{T0} offen {self.pubflags}")
        A(f"buffer_store_dwordx4 v[{G[4]}:{G[7]}], v41, s[{WSS}:{WSS+3}], s{T0} offen offset:16 {self.pubflags}")

    def exchange(self, WSS, SB, SCG):
        A = self.A
        T0, T1, T2, T3, T4, T5 = self.T
        A("v_mov_b32 v10, 0")
        def test_flags():
            A(f"ds_read_b128 v[24:27], v10 offset:{L_FL}")
            A("s_waitcnt lgkmcnt(0)")
            A("v_bitop3_b32 v24, v24, v25, v26 bitop3:0x80")
            A("v_and_b32 v24, v24, v27")
            A("s_nop 0")
            A(f"v_readfirstlane_b32 s{T0}, v24")
            A("s_nop 3")
            A(f"s_cmp_eq_u32 s{T0}, 1")
        self.lds_wait(test_flags)
        A("v_and_b32 v13, 3, v2")
        A("v_lshlrev_b32 v13, 3, v13")
        A(f"ds_read_b64 v[24:25], v13 offset:{L_ML}")
        A("s_waitcnt lgkmcnt(0)")
        A(f"s_mov_b32 s{T1}, 0x3fb8aa3b")
        A(f"v_max_f32_dpp v26, v24, v24 quad_perm:[2,3,0,1] {DPPF}")
        A("s_nop 1")
        A(f"v_max_f32_dpp v26, v26, v26 quad_perm:[1,0,3,2] {DPPF}")
        A("v_sub_f32 v27, v24, v26")
        A(f"v_mul_f32 v27, s{T1}, v27")
        A("v_exp_f32 v27, v27")
        A("s_nop 0")
        A("v_mul_f32 v27, v27, v25")
        A("s_nop 1")
        A(f"v_add_f32_dpp v27, v27, v27 quad_perm:[2,3,0,1] {DPPF}")
        A("s_nop 1")
        A(f"v_add_f32_dpp v27, v27, v27 quad_perm:[1,0,3,2] {DPPF}")
        A("v_mov_b32 v28, v26")
        A("v_mov_b32 v29, v27")
        self.tag(28); self.tag(29)
        A("v_mov_b32 v30, v28")
        A("v_mov_b32 v31, v29")
        A("v_and_b32 v26, 0xffffff00, v26")
        A("v_and_b32 v27, 0xffffff00, v27")
        A(f"s_lshl_b32 s{T2}, s2, 7")
        A(f"s_add_u32 s{T2}, s{T2}, {WS_ML}")
        A("s_mov_b64 exec, 1")
        A(f"buffer_store_dwordx4 v[28:31], v10, s[{WSS}:{WSS+3}], s{T2} offen {self.pubflags}")
        A(f"buffer_store_dwordx4 v[28:31], v10, s[{WSS}:{WSS+3}], s{T2} offen offset:16 {self.pubflags}")
        A("s_mov_b64 exec, -1")
        def test_prog():
            A(f"ds_read_b32 v30, v10 offset:{L_PR}")
            A("s_waitcnt lgkmcnt(0)")
            A(f"v_readfirstlane_b32 s{T0}, v30")
            A("s_nop 3")
            A(f"s_cmp_ge_u32 s{T0}, {16 + self.LG}")
        self.lds_wait(test_prog, sleep=16)
        A("v_lshlrev_b32 v10, 11, v2")
        A(f"s_mul_i32 s{T2}, s{SB}, {43*2048}")
        A(f"s_lshl_b32 s{T3}, s{SCG}, 5")
        A(f"s_add_u32 s{T2}, s{T2}, s{T3}")
        A(f"s_add_u32 s{T2}, s{T2}, {WS_Y2}")
        for e in range(8):
            A(f"v_mov_b32 v{32+e}, 0")
        A("s_mov_b32 exec_hi, 0x7ff")
        self.poll(32, 8, 10, WSS, T2, 16, code=2)
        A("s_nop 1")
        self.reduce8_wave(list(range(32, 40)))
        self.round_bf16(32, 32)
        A("v_mul_f32 v33, 0xbfb8aa3b, v32")
        A("v_exp_f32 v33, v33")
        A("s_nop 0")
        A("v_add_f32 v33, 1.0, v33")
        A("v_rcp_f32 v34, v33")
        A("s_nop 0")
        A("v_mul_f32 v35, v32, v34")
        self.round_bf16(35, 35)
        A("v_lshrrev_b32 v13, 3, v2")
        A("v_lshlrev_b32 v13, 2, v13")
        A(f"ds_write_b32 v13, v35 offset:{L_G}")
        A(f"s_xor_b32 s{T2}, s2, 32")
        A(f"s_lshl_b32 s{T2}, s{T2}, 7")
        A(f"s_add_u32 s{T2}, s{T2}, {WS_ML}")
        A("v_mov_b32 v10, 0")
        self.poll(44, 8, 10, WSS, T2, 16, code=3)
        A("v_mov_b32 v28, v44")
        A("v_mov_b32 v29, v45")
        A("v_max_f32 v30, v26, v28")
        A("v_sub_f32 v31, v26, v30"); A(f"v_mul_f32 v31, s{T1}, v31"); A("v_exp_f32 v31, v31")
        A("v_sub_f32 v40, v28, v30"); A(f"v_mul_f32 v40, s{T1}, v40"); A("v_exp_f32 v40, v40")
        A("v_sub_f32 v41, v24, v30"); A(f"v_mul_f32 v41, s{T1}, v41"); A("v_exp_f32 v41, v41")
        A("v_mul_f32 v31, v31, v27")
        A("v_fmac_f32 v31, v40, v29")
        A("v_rcp_f32 v40, v31")
        A("s_nop 0")
        A("v_mul_f32 v42, v41, v40")
        A("v_fma_f32 v43, -v42, v31, v41")
        A("v_fmac_f32 v42, v43, v40")
        A("v_and_b32 v13, 3, v2")
        A("v_lshlrev_b32 v13, 2, v13")
        A(f"ds_write_b32 v13, v42 offset:{L_SC}")

    def generate(self):
        A = self.A
        self.L.append(HEADER + f"; @launch grid=(256,1,1) block=(512,1,1) lds={self.lds_bytes}")
        self.L.append('.amdgcn_target "amdgcn-amd-amdhsa--gfx950"')
        self.L.append(".text")
        self.L.append(f".globl {KNAME}")
        self.L.append(".p2align 8")
        self.L.append(f".type {KNAME},@function")
        self.lab(KNAME)
        A("s_cmp_ge_u32 s2, 0x100")
        A("s_cbranch_scc1 L_exit")
        if self.fastentry:
            A("s_load_dwordx2 s[12:13], s[0:1], 8")
            A("s_load_dwordx2 s[16:17], s[0:1], 16")
        else:
            A("s_load_dwordx4 s[8:11], s[0:1], 8")
        A("v_lshrrev_b32 v1, 6, v0")
        A("v_and_b32 v2, 63, v0")
        self.stamp(0)
        A("v_readfirstlane_b32 s3, v1")
        A("s_nop 1")
        A("s_cmp_ge_u32 s3, 4")
        A("s_cbranch_scc1 L_helper")
        self.streamer()
        self.helper()
        self.lab("L_exit")
        A("s_endpgm")
        self.lab("L_code_end")
        body = [ln for ln in self.L if ln.startswith("  ") and not ln.strip().startswith(";")]
        kb = (len(body) * 8 + 1023) // 1024 + 1
        out = []
        for ln in self.L:
            if "PREFETCH_PLACEHOLDER" in ln:
                for i in range((kb + 31) // 32):
                    out.append(f"  v_min_u32 v13, L_code_end-{KNAME}-16, v10")
                    out.append("  global_load_dwordx4 v[196:199], v13, s[90:91]")
                    out.append("  v_add_u32 v10, 0x8000, v10")
            else:
                out.append(ln)
        self.L = out
        self.L.append('.section .rodata,"a"')
        self.L.append(".p2align 6")
        self.L.append(f".amdhsa_kernel {KNAME}")
        self.L.append("  .amdhsa_next_free_vgpr 240")
        self.L.append("  .amdhsa_next_free_sgpr 96")
        self.L.append("  .amdhsa_accum_offset 240")
        self.L.append("  .amdhsa_group_segment_fixed_size 0")
        self.L.append("  .amdhsa_kernarg_size 96")
        self.L.append("  .amdhsa_user_sgpr_count 2")
        self.L.append("  .amdhsa_user_sgpr_kernarg_segment_ptr 1")
        self.L.append("  .amdhsa_system_sgpr_workgroup_id_x 1")
        self.L.append("  .amdhsa_float_denorm_mode_32 3")
        self.L.append(".end_amdhsa_kernel")
        return "\n".join(self.L) + "\n"


if __name__ == "__main__":
    os.makedirs("out", exist_ok=True)
    names = []
    def add(name, **kw):
        txt = Gen(**kw).generate()
        build(txt, "out/" + name, KNAME)
        names.append("out/" + name)
    if len(sys.argv) > 1:
        exec(open(sys.argv[1]).read())
    else:
        add("v2")
    open("out/mlist.txt", "w").write("\n".join(names) + "\n")
    print(names)
```
